```python
import torch

def _softmax(x, axis=-1):
    return torch.softmax(x, dim=axis)
def _gelu(x):
    return torch.nn.functional.gelu(x, approximate="tanh")
def _silu(x):
    return torch.nn.functional.silu(x)
def _sigmoid(x):
    return torch.sigmoid(x)
def _layernorm(x, axis=-1, eps=1e-5):
    m = x.mean(dim=axis, keepdim=True)
    v = x.var(dim=axis, keepdim=True, unbiased=False)
    return (x - m) / torch.sqrt(v + eps)
def _scatter_add(tgt, idx, src, axis=0):
    return tgt.clone().index_add_(axis, idx, src)
def _segment_sum(src, seg, n):
    out = torch.zeros((n,) + src.shape[1:], dtype=src.dtype)
    return out.index_add_(0, seg, src)
def _pad(x, pw):
    flat = tuple(v for pair in reversed(pw) for v in pair)
    return torch.nn.functional.pad(x, flat)

kernel_name = 'standalone__gqa_softmax__near_ridge'

def setup_inputs():

    _w = (lambda a: (lambda t: t.to(torch.bfloat16) if t.is_floating_point() else t)(torch.as_tensor(a)))
    B, Hq, Hkv, Sq, Sk, D = 16, 32, 32, 848, 512, 128
    return {
        "q": _w((lambda *s: torch.randn(*s, dtype=torch.bfloat16) * 0.8)(B, Hq, Sq, D)),
        "k": _w((lambda *s: torch.randn(*s, dtype=torch.bfloat16) * 0.8)(B, Hkv, Sk, D)),
        "v": _w((lambda *s: torch.randn(*s, dtype=torch.bfloat16) * 0.05)(B, Hkv, Sk, D)),
    }

def reference(q, k, v):
    B, Hq, Sq, D = q.shape
    Hkv = k.shape[1]
    rep = Hq // Hkv
    k = (lambda x, n, axis: torch.repeat_interleave(x, n, dim=axis))(k, rep, axis=1)
    v = (lambda x, n, axis: torch.repeat_interleave(x, n, dim=axis))(v, rep, axis=1)
    scale = D ** -0.5
    scores = torch.einsum("bhqd,bhkd->bhqk", q, k) * scale
    p = _softmax(scores, axis=-1)
    return torch.einsum("bhqk,bhkd->bhqd", p, v)
```

```python
import re

class I:
    __slots__ = ("text", "kind", "rd", "wr", "rdC", "info")
    def __init__(self, text, kind, rd=(), wr=(), rdC=(), info=None):
        self.text = text; self.kind = kind
        self.rd = frozenset(rd); self.wr = frozenset(wr); self.rdC = frozenset(rdC); self.info = info
    def __repr__(self): return self.text

def regs(spec):
    spec = spec.strip()
    if spec.startswith("-"): spec = spec[1:]
    m = re.fullmatch(r"([vas])\[(\d+):(\d+)\]", spec)
    if m: return [f"{m.group(1)}{i}" for i in range(int(m.group(2)), int(m.group(3)) + 1)]
    m = re.fullmatch(r"([vas])(\d+)", spec)
    if m: return [spec]
    if spec == "vcc": return ["vcc"]
    if spec in ("m0", "exec"): return [spec]
    return []

def R(t, a, n=1):
    return f"{t}{a}" if n == 1 else f"{t}[{a}:{a+n-1}]"

TRANS = ("v_exp_f32", "v_rcp_f32", "v_log_f32")

def valu(op, dst, *src, mods="", rmw=False):
    rd = [r for s in src for r in regs(str(s))]
    if rmw: rd += regs(dst)
    kind = "trans" if op in TRANS else "valu"
    t = f"{op} {dst}, " + ", ".join(str(s) for s in src) + (" " + mods if mods else "")
    return I(t, kind, rd, regs(dst))

def salu(op, dst, *src):
    rd = [r for s in src for r in regs(str(s))]
    t = f"{op} {dst}" + "".join(f", {s}" for s in src)
    return I(t, "salu", rd, regs(dst))

def scmp(op, a, b):
    return I(f"{op} {a}, {b}", "salu", regs(str(a)) + regs(str(b)), ())

def mfma(d, a, b, c):
    return I(f"v_mfma_f32_16x16x32_bf16 {d}, {a}, {b}, {c}", "mfma", regs(a) + regs(b), regs(d), regs(str(c)))

def dsread(op, dst, addr, off):
    return I(f"{op} {dst}, {addr} offset:{off}", "dsr", regs(addr), regs(dst))

def dswrite(op, addr, data, off):
    return I(f"{op} {addr}, {data} offset:{off}", "dsw", regs(addr) + regs(data), ())

def dma(voff, srd, soff, off=0, flags="", tag=None):
    t = f"buffer_load_dwordx4 {voff}, {srd}, {soff} offen" + (f" offset:{off}" if off else "") + (f" {flags}" if flags else "") + " lds"
    return I(t, "dma", regs(voff) + regs(srd) + regs(str(soff)) + ["m0"], (), info=tag)

def bload(dst, voff, srd, soff, off=0, flags="", op="buffer_load_dwordx4", tag=None):
    t = f"{op} {dst}, {voff}, {srd}, {soff} offen" + (f" offset:{off}" if off else "") + (f" {flags}" if flags else "")
    return I(t, "vld", regs(voff) + regs(srd) + regs(str(soff)), regs(dst), info=tag)

def bstore(data, voff, srd, soff, off=0, flags="", op="buffer_store_dwordx4", tag=None):
    t = f"{op} {data}, {voff}, {srd}, {soff} offen" + (f" offset:{off}" if off else "") + (f" {flags}" if flags else "")
    return I(t, "vst", regs(data) + regs(voff) + regs(srd) + regs(str(soff)), (), info=(tag, regs(data)))

def wait(vm=None, lgkm=None):
    t = "s_waitcnt" + (f" vmcnt({vm})" if vm is not None else "") + (f" lgkmcnt({lgkm})" if lgkm is not None else "")
    return I(t, "wait", info=(vm, lgkm))

def nop(n=0): return I(f"s_nop {n}", "nop", info=n)
def barrier(): return I("s_barrier", "barrier")
def label(n): return I(f"{n}:", "label")
def branch(op, target): return I(f"{op} {target}", "branch")
def raw(text, kind="other", rd=(), wr=()): return I(text, kind, rd, wr)
def comment(t): return I(f"; {t}", "label")
def need(tag, n):
    return I("", "need", info=(tag, n))
def reset(tag, issued_q=0): return I("", "reset", info=(tag, issued_q))

VAL = ("valu", "trans")

def check(seq, name="", slack=None):
    errs = []
    full = [x for x in seq if x.kind != "label"]
    seq = [x for x in full if x.kind not in ("need", "reset")]
    pos = []; p = 0
    for x in seq:
        pos.append(p)
        p += (x.info + 1) if x.kind == "nop" else 1
    def dist(i, j): return pos[j] - pos[i] - 1
    for j, y in enumerate(seq):
        for i in range(j - 1, max(-1, j - 12), -1):
            x = seq[i]; d = dist(i, j)
            need = 0; why = ""
            yr = y.rd | y.rdC
            if x.kind == "mfma":
                if y.kind in VAL and x.wr & (yr | y.wr): need, why = 8, "mfma D -> valu"
                elif y.kind in ("dsw", "vst", "dsr", "vld", "dma") and x.wr & (yr | y.wr): need, why = 8, "mfma D -> mem"
                elif y.kind == "mfma" and x.wr & y.rd: need, why = 8, "mfma D -> mfma A/B"
                elif y.kind == "mfma" and x.wr & y.rdC and x.wr != y.rdC: need, why = 6, "mfma D -> overlapping C"
                elif y.kind in VAL and x.rdC & y.wr: need, why = 3, "mfma C WAR"
            elif x.kind in VAL:
                sw = {r for r in x.wr if r[0] == "s" or r == "vcc"}
                if y.kind == "mfma" and x.wr & yr: need, why = 2, "valu -> mfma"
                elif y.kind in ("dma", "vld", "vst") and sw & yr: need, why = 5, "valu sgpr -> vmem"
                elif y.kind in VAL and sw & yr: need, why = 2, "valu sgpr -> valu"
                elif y.kind in VAL and "permlane" in y.text and x.wr & yr: need, why = 2, "valu -> permlane"
                elif y.kind in VAL and "readfirstlane" in y.text and x.wr & yr: need, why = 1, "valu -> readfirstlane"
                elif x.kind == "trans" and y.kind == "valu" and x.wr & yr: need, why = 1, "trans -> valu"
            elif x.kind == "salu" and "m0" in x.wr and y.kind == "dma": need, why = 1, "m0 -> dma"
            elif x.kind == "vst" and y.kind in VAL and set(x.info[1]) & y.wr: need, why = 2, "store data WAR"
            if d < need: errs.append(f"{name}: {why} need {need} have {d}: [{x.text}] -> [{y.text}]")
    lg = []; vm = []; issued = {}; nbar = 0
    tagof = lambda x: x.info[0] if x.kind == "vst" else x.info
    for y in full:
        if y.kind == "reset":
            issued[y.info[0]] = y.info[1]; continue
        if y.kind == "need":
            tag, n = y.info
            if n == "step":
                nbar += 1; n = 4 * (nbar + 1)
                if nbar == 3 and any(tagof(x) == "kv3" for x in vm): errs.append(f"{name}: deferred block 3 pending")
                if any("_tr_" in x.text for x in lg): errs.append(f"{name}: ring read still pending at barrier")
            done = issued.get(tag, 0) - sum(1 for x in vm if tagof(x) == tag)
            if slack is not None and y.info[1] == "step": slack.setdefault(id(y), []).append(done - n)
            if done < n: errs.append(f"{name}: need {n} retired '{tag}' ops, have {done} (issued {issued.get(tag, 0)})")
            continue
        if y.kind in ("dma", "vld", "vst"): issued[tagof(y)] = issued.get(tagof(y), 0) + 1
        if y.kind == "wait" and y.info[1] is not None and y.info[1] > 14: errs.append(f"{name}: lgkmcnt too large")
        use = y.rd | y.rdC | y.wr
        for q, nm in ((lg, "lgkm"), (vm, "vm")):
            for x in q:
                if x.wr & use: errs.append(f"{name}: pending {nm} [{x.text}] used by [{y.text}]")
        if y.kind in ("dsr", "dsw", "smem"): lg.append(y)
        elif y.kind in ("dma", "vld", "vst"): vm.append(y)
        elif y.kind == "wait":
            v, l = y.info
            if v is not None: vm = vm[len(vm) - v:] if v < len(vm) else vm
            if v == 0: vm = []
            if l is not None: lg = lg[len(lg) - l:] if l < len(lg) else lg
            if l == 0: lg = []
    return errs
```

```python
import sys, struct, math
from asmlib import *

KNAME = "standalone__gqa_softmax__near_ridge_kernel"
OPT = dict(kv="nt", q="nt", o="nt", stamps=False)

HEAD_Q = 848 * 256
HEAD_KV = 512 * 256
QBYTES = 512 * HEAD_Q
PITCH = 1056
BLK = 8 * PITCH
SLOT = 2 * BLK
STG0 = 3 * SLOT
STGW = 6 * 4096
LSUM = STG0 + 4 * STGW
LDS = LSUM + 1024
ORDER7 = [0, 1, 2, 6, 3, 4, 5]
ORDER6 = [0, 1, 2, 3, 4, 5]

vS, vT, vP = 192, 200, 208
vK, vV, vKb, vVb, vSt, vLin, vSw0, vSw1, vQa, vOw, vFr, vStb = range(212, 224)
vTMP = 224
vQx = 232
vOx = 235
vRc = 242
vMx, vMn = 250, 251
aQ, aQ6n, aK, aV, aL, aONE, aO6 = 0, 112, 128, 160, 192, 220, 224
SK, SV, SQ, SO = "s[4:7]", "s[8:11]", "s[12:15]", "s[16:19]"
(sW, sC, sRd, sTop, sW2112, sKV, sQ, sO, sSM, sCnt, sRound, sCur0, sCur6, sNx0, sNx6,
 sE0, sE6, sF0, sF6, sHead, sFlag, sStg, sT0, sT1, sT2, sLo, sSpan, sPair, sRole, sI, sJ) = [f"s{i}" for i in range(28, 59)]

def v(i, n=1): return R("v", i, n)
def a(i, n=1): return R("a", i, n)
def Oreg(t, j): return a(aO6 + 4 * j, 4) if t == 6 else v(32 * t + 4 * j, 4)
def fbits(x): return struct.unpack("<I", struct.pack("<f", x))[0]
L_LO, L_HI = fbits(2.0 ** -24), fbits(2.0 ** 40)

def qk(t, i):
    hb, ks = i >> 2, i & 3
    d = v(vS + 4 * hb, 4)
    return mfma(d, a(aK + 4 * i, 4), a(aQ + 16 * t + 4 * ks, 4), 0 if ks == 0 else d)
def pv(t, j, first):
    d = Oreg(t, j)
    return mfma(d, a(aV + 4 * j, 4), v(vP, 4), 0 if first else d)
def summ(t, first):
    d = a(aL + 4 * t, 4)
    return mfma(d, a(aONE, 4), v(vP, 4), 0 if first else d)

def softmax_groups():
    m = lambda i: valu("v_mul_f32", v(vT + i), sC, v(vS + i))
    e = lambda i: valu("v_exp_f32", v(vT + i), v(vT + i))
    c = lambda i: valu("v_cvt_pk_bf16_f32", v(vP + i), v(vT + 2 * i), v(vT + 2 * i + 1))
    return [[m(0), m(1)], [e(0)], [e(1)], [m(2), m(3)], [e(2)], [m(4), m(5)], [e(3)], [m(6), m(7)],
            [e(4)], [e(5)], [c(0), c(1)], [e(6)], [e(7)], [c(2), c(3)]]
HEAD0, HEADL = 8, 7

def kread(i): return dsread("ds_read_b128", a(aK + 4 * i, 4), v(vK), (i >> 2) * 512 + (i & 3) * 64)
def vread(j): return [dsread("ds_read_b64_tr_b16", a(aV + 4 * j + 2 * hb, 2), v(vV), BLK + hb * 512 + j * 32) for hb in (0, 1)]

def gap_cost(ins):
    t = 4; prev = "mfma"
    for x in ins:
        k = x.kind
        if k in ("label", "need", "reset"): continue
        if k in VAL:
            if prev == "ds": t += 4
            t = max(t, 8) + (8 if k == "trans" else 4); prev = "valu"
        elif k == "dsr":
            if prev == "valu": t += 4
            t += 4; prev = "ds"
        else:
            if prev == "ds": t += 4
            t += {"dma": 12, "vst": 24, "barrier": 13, "branch": 8}.get(k, 4); prev = k
    if prev == "ds": t += 4
    return max(16, t)

def step(order, first, plan, vmN, exit_label=None, zero6=True):
    n = len(order); NG = 17 * n
    at = lambda k, g: 17 * ((k - 1) % n) + g
    kvf, qf, of = OPT["kv"], OPT["q"], OPT["o"]
    job = "st0" in plan
    ops = {
        "bar": [wait(vm=vmN), need("kv", "step"), barrier()],
        "d0": [dma(v(vLin), SK, sKV, 0, kvf, "kv")], "d1": [dma(v(vLin), SK, sKV, 1024, kvf, "kv")],
        "d2": [dma(v(vLin), SV, sKV, 0, kvf, "kv")], "d3": [dma(v(vLin), SV, sKV, 1024, kvf, "kv")],
        "jr": [dsread("ds_read_b128", v(vTMP, 4), v(vSt), 0), dsread("ds_read_b128", v(vTMP + 4, 4), v(vSt), 1024)],
        "st0": [bstore(v(vTMP, 4), v(vSw0), SO, sO, 0, of)], "st1": [bstore(v(vTMP + 4, 4), v(vSw1), SO, sO, 1024, of)],
        "q0": [dma(v(vSw0), SQ, sQ, 0, qf, "q")], "q1": [dma(v(vSw1), SQ, sQ, 1024, qf, "q")],
        "upk": [valu("v_add_u32", v(vK), sRd, v(vKb))], "upv": [valu("v_add_u32", v(vV), sRd, v(vVb))],
        "ups": [valu("v_add_u32", v(vSt), 2048, v(vSt))],
        "last": [branch("s_cbranch_scc1", exit_label)] if exit_label else [],
    }
    for j in range(8): ops[f"v{j}"] = vread(j); ops[f"k{j}"] = [kread(j)]
    body = [[] for _ in range(NG)]; pre = [[] for _ in range(NG)]
    free = set(); extra = []; idx = {}
    for name, pos in plan.items():
        i = at(pos[0], pos[1]); idx[name] = i
        if len(pos) > 2: extra.append((i, ops[name]))
        else: free.add(i); body[i] += ops.get(name, [])
    for k in range(n):
        gaps = [at(k, g) for g in range(7, 17)] + [at(k + 1, g) for g in range(7)]
        nf = [sum(i in free for i in gaps[:10]), sum(i in free for i in gaps[10:])]
        assert sum(nf) == 3, (k, nf)
        if k == 0: assert 10 - nf[0] == HEAD0
        if k == n - 1: assert 10 - nf[0] == HEADL
        gs = softmax_groups()
        for i in gaps:
            if i not in free: body[i] += gs.pop(0)
    for i, ins in extra: body[i] += ins
    ms = [None] * NG
    for k in range(n):
        t, tp = order[k], order[k - 1]
        z = first and (tp != 6 or zero6)
        pvs = [pv(tp, j, z) for j in range(8)]
        seq = [qk(t, i) for i in range(8)] + ((pvs + [summ(tp, z)]) if k == 0 else ([summ(tp, z)] + pvs))
        for g in range(17): ms[at(k, g)] = seq[g]
    def can(i): return not pre[i] and (not body[i] or body[i][0].kind in VAL)
    def place(ins, lo, hi, latest=True):
        cand = [i for i in range(lo, hi) if can(i)]
        assert cand, (ins.text, lo, hi)
        i = cand[-1] if latest else cand[0]
        pre[i].append(ins); return i
    pend = [(-7, x) for j in range(4) for x in vread(j)]
    waits = []
    for i in range(NG):
        cons = [(ms[i], i)] + [(x, i) for x in body[i] if x.kind == "vst"]
        for y, _ in cons:
            hit = [p for p, (gi, x) in enumerate(pend) if x.wr & (y.rd | y.rdC)]
            if not hit: continue
            p = max(hit)
            cand = [h for h in range(max(pend[p][0] + 1, 0), i) if can(h)]
            assert cand, (y.text, i)
            h = cand[-1]
            while p + 1 < len(pend) and pend[p + 1][0] <= h - 6: p += 1
            pre[h].append(wait(lgkm=sum(1 for gi, x in pend[p + 1:] if gi < h)))
            pend = pend[p + 1:]
        pend += [(i, x) for x in body[i] if x.kind == "dsr"]
    m0 = {"d0": salu("s_mov_b32", "m0", sRd), "d1": salu("s_add_u32", "m0", sRd, 32),
          "d2": salu("s_add_u32", "m0", sRd, BLK), "d3": salu("s_add_u32", "m0", sRd, BLK + 32),
          "q0": salu("s_mov_b32", "m0", sSM), "q1": salu("s_mov_b32", "m0", sSM)}
    dm = sorted((idx[nm], nm) for nm in m0 if nm in idx)
    prev = (-1, None); m0pos = {}
    for i, nm in dm:
        if not (nm == "q1" and prev[1] == "q0"): m0pos[nm] = place(m0[nm], prev[0] + 1, i)
        prev = (i, nm)
    assert idx["bar"] < min(idx[d] for d in ("d0", "d1", "d2", "d3"))
    assert idx["bar"] > at(1, 14)
    lastd = max(idx[d] for d in ("d0", "d1", "d2", "d3"))
    up = min(idx["upk"], idx["upv"])
    cand = [i for i in range(max(m0pos[d] for d in ("d0", "d1", "d2", "d3")) + 1, up) if can(i)]
    pair = [(x, y) for x, y in zip(cand, cand[1:]) if all(not pre[z] or pre[z][0].kind == "wait" or pre[z][0].text.startswith("s_mov") for z in range(x, y))]
    x, y = pair[0]
    pre[x].append(salu("s_sub_u32", sRd, sRd, SLOT)); pre[y].append(salu("s_cselect_b32", sRd, sTop, sRd))
    lo = max(y, lastd) + 1
    hi = idx["last"]
    if exit_label: hi = place(salu("s_sub_u32", sCnt, sCnt, 1), lo, hi)
    place(salu("s_add_u32", sKV, sKV, 8192), lo, hi, False)
    if job:
        place(salu("s_add_u32", sO, sO, 2048), max(lo, idx["st1"] + 1), hi, False)
        place(salu("s_add_u32", sQ, sQ, 2048), max(lo, idx["q1"] + 1), hi, False)
        place(salu("s_add_u32", sSM, sSM, 2048), max(lo, idx["q1"] + 1), hi, False)
        assert idx["jr"] < idx["ups"] and idx["st0"] < idx["q0"] and idx["jr"] < idx["st0"]
    assert idx["upv"] > idx["v7"] and idx["upk"] < idx["k0"]
    out = []; t = 0; tb = None
    drop = OPT.get("drop", "").split()
    for i in range(NG):
        if i % 17 == 0:
            k = (i // 17 + 1) % n
            out.append(comment(f"slot {k}: QK subtile {order[k]}, PV subtile {order[k-1]}"))
        if i == 17 * (n - 1): cut = len(out) - 1
        if i == idx["bar"]: tb = t
        g = [x for x in pre[i] + body[i] if x.kind not in drop]
        out.append(ms[i]); out += g; t += gap_cost(g)
    return out[:cut], out[cut:], tb, t

def vk_sites(n, v67=(7, 7)):
    L = n - 1
    return {"v0": (0, 10), "v1": (0, 10), "v2": (0, 14), "v3": (0, 14), "v4": (1, 1), "v5": (1, 1), "v6": (1, v67[0]), "v7": (1, v67[1]),
            "k0": (L, 1), "k1": (L, 1), "k2": (L, 5), "k3": (L, 5), "k4": (L, 8), "k5": (L, 8), "k6": (L, 11), "k7": (L, 11), "last": (L, 16)}

def plan_a(job):
    p = vk_sites(7)
    p.update({"bar": (2, 0), "d0": (2, 4), "d1": (2, 9), "d2": (2, 14), "d3": (3, 2), "upk": (3, 13), "upv": (3, 13)})
    if job: p.update({"jr": (3, 9), "st0": (4, 3), "st1": (4, 9), "q0": (4, 14), "q1": (5, 2), "ups": (5, 10)})
    else: p.update({"e0": (3, 9), "e1": (4, 3), "e2": (4, 9), "e3": (4, 14), "e4": (5, 2), "e5": (5, 10)})
    return p

def plan_b(p_):
    if p_ == 0:
        p = vk_sites(7, (7, 9))
        p.update({"e0": (2, 3), "bar": (2, 10), "d0": (2, 14), "d1": (3, 2), "d2": (3, 9), "d3": (3, 14), "e1": (4, 3),
                  "upk": (4, 9), "upv": (4, 9), "e2": (4, 14), "e3": (5, 2), "e4": (5, 10)})
        return p
    p = vk_sites(6)
    p["jr"] = (1, 7)
    if p_ == 1: p.update({"bar": (1, 15), "d0": (2, 3), "d1": (2, 8), "d2": (2, 13), "d3": (3, 1), "st0": (3, 8), "st1": (3, 13), "q0": (4, 1), "q1": (4, 9)})
    if p_ == 2: p.update({"st0": (1, 15), "bar": (2, 1), "d0": (2, 8), "d1": (2, 13), "d2": (3, 1), "d3": (3, 8), "st1": (3, 13), "q0": (4, 1), "q1": (4, 9)})
    if p_ == 3: p.update({"st0": (1, 15), "bar": (2, 5), "d0": (2, 9), "d1": (2, 13), "d2": (3, 1), "d3": (3, 8), "st1": (3, 13), "q0": (4, 1), "q1": (4, 9)})
    p.update({"upk": (4, 12, "x"), "upv": (4, 14, "x"), "ups": (4, 16, "x")})
    return p

def stamp():
    if not OPT["stamps"]: return []
    return [raw("s_memtime s[60:61]", "smem", (), regs("s[60:61]")), raw("s_memrealtime s[62:63]", "smem", (), regs("s[62:63]")),
            wait(lgkm=0), valu("v_mov_b32", "v252", "s60"), valu("v_mov_b32", "v253", "s62"), valu("v_mov_b32", "v254", 0),
            raw("s_mov_b64 exec, 1", "salu"),
            bstore("v[252:253]", "v254", "s[64:67]", "s68", op="buffer_store_dwordx2"),
            raw("s_mov_b64 exec, -1", "salu"), salu("s_add_u32", "s68", "s68", 8), nop(3)]
def stamp_init():
    if not OPT["stamps"]: return []
    return [raw("s_load_dwordx2 s[64:65], s[0:1], 40", "smem", (), regs("s[64:65]")), wait(lgkm=0),
            salu("s_mov_b32", "s66", 1 << 20), salu("s_mov_b32", "s67", "0x20000"),
            salu("s_lshl_b32", "s68", "s2", 2), salu("s_add_u32", "s68", "s68", sW), salu("s_lshl_b32", "s68", "s68", 8)] + stamp()
def dbg_begin():
    if not OPT.get("dbg"): return []
    return [raw("s_memtime s[70:71]", "smem", (), regs("s[70:71]")), raw("s_memrealtime s[72:73]", "smem", (), regs("s[72:73]")),
            raw("s_load_dwordx2 s[76:77], s[0:1], 32", "smem", (), regs("s[76:77]")), wait(lgkm=0),
            salu("s_mov_b32", "s78", 64), salu("s_mov_b32", "s79", "0x20000")]
def dbg_end():
    if not OPT.get("dbg"): return []
    return [wait(vm=0), raw("s_memtime s[60:61]", "smem", (), regs("s[60:61]")), raw("s_memrealtime s[62:63]", "smem", (), regs("s[62:63]")),
            wait(lgkm=0), salu("s_sub_u32", "s60", "s60", "s70"), salu("s_sub_u32", "s62", "s62", "s72"),
            salu("s_lshl_b32", "s61", sW, 8), salu("s_add_u32", "s61", "s61", "s2"), salu("s_lshl_b32", "s61", "s61", 3),
            valu("v_mov_b32", "v252", "s60"), valu("v_mov_b32", "v253", "s62"), valu("v_mov_b32", "v254", "s61"),
            raw("s_mov_b64 exec, 1", "salu"),
            bstore("v[252:253]", "v254", "s[76:79]", 0, op="buffer_store_dwordx2"), raw("s_mov_b64 exec, -1", "salu")]

def flat(gs): return [x for g in gs for x in g]
def spaced(seq):
    out = []
    for x in seq:
        if out and out[-1].kind == "trans" and x.kind == "valu" and out[-1].wr & x.rd: out.append(nop(0))
        out.append(x)
    return out
def weave(ms, fill, pres=()):
    out = []; fill = list(fill); pres = list(pres)
    for m_ in ms:
        out.append(m_)
        g = fill.pop(0) if fill else []
        if pres and (not g or g[0].kind in VAL): out.append(pres.pop(0))
        out += g
    return out + flat(fill) + pres
def pairs(seq): return [seq[i:i + 2] for i in range(0, len(seq), 2)]

def qaddr(ks): return v(vQa) if ks == 0 else v(vQx + ks - 1)
def oaddr(j): return v(vOw) if j == 0 else v(vOx + j - 1)
def qreads(t, slot=None):
    slot = t if slot is None else slot
    return ([need("q", 4 * t + 4)] if t < 6 else []) + \
        [dsread("ds_read_b128", a(aQ + 16 * t + 4 * ks, 4), qaddr(ks), 4096 * slot) for ks in range(4)]
def q6bounce(slot): return [dswrite("ds_write_b128", v(vStb), a(aQ6n + 4 * n, 4), 4096 * slot + 1024 * n) for n in range(4)]
def q6loads(soff): return [bload(a(aQ6n + 4 * n, 4), v(vSw1 if n & 1 else vSw0), SQ, soff, 1024 * n, OPT["q"]) for n in range(4)]
def readback(slot, dst): return [dsread("ds_read_b128", v(dst + 4 * n, 4), v(vStb), 4096 * slot + 1024 * n) for n in range(4)]
def stores(src, soff): return [bstore(v(src + 4 * n, 4), v(vSw1 if n & 1 else vSw0), SO, soff, 1024 * n, OPT["o"]) for n in range(4)]

def flag(mask):
    return [salu("s_lshl_b32", sFlag, sFlag, 1), scmp("s_cmp_lg_u64", mask, 0), salu("s_addc_u32", sFlag, sFlag, 0)]
def l_own():
    r = lambda t: v(vRc + t)
    g = pairs([valu("v_accvgpr_read_b32", r(t), a(aL + 4 * t)) for t in range(6)])
    g += [[valu("v_max3_u32", v(vMx), r(0), r(1), r(2)), valu("v_min3_u32", v(vMn), r(0), r(1), r(2))],
          [valu("v_max3_u32", v(vMx), v(vMx), r(3), r(4)), valu("v_min3_u32", v(vMn), v(vMn), r(3), r(4))],
          [valu("v_max_u32", v(vMx), v(vMx), r(5)), valu("v_min_u32", v(vMn), v(vMn), r(5))],
          [valu("v_subrev_u32", v(vMx), sLo, v(vMx)), valu("v_subrev_u32", v(vMn), sLo, v(vMn))],
          [valu("v_max_u32", v(vMx), v(vMx), v(vMn)), valu("v_cmp_lt_u32", "vcc", sSpan, v(vMx))]]
    g += [[valu("v_rcp_f32", r(t), r(t))] for t in range(6)]
    return g, flag("vcc")
def l_six():
    r = v(vRc + 6)
    return [valu("v_subrev_u32", v(vMx), sLo, r), valu("v_cmp_lt_u32", "vcc", sSpan, v(vMx)), valu("v_rcp_f32", r, r), nop(1)] + flag("vcc")

def scale_pack(t, base, nblk):
    rp = v(vRc + (t & ~1), 2)
    mods = "op_sel_hi:[1,0]" if t % 2 == 0 else "op_sel:[0,1] op_sel_hi:[1,1]"
    o = [valu("v_pk_mul_f32", v(base + 2 * i, 2), v(base + 2 * i, 2), rp, mods=mods) for i in range(2 * nblk)]
    for b in range(nblk):
        o += [valu("v_cvt_pk_bf16_f32", v(base + 4 * b + i), v(base + 4 * b + 2 * i), v(base + 4 * b + 2 * i + 1)) for i in range(2)]
    return o
def epi(t, slot, tmp=None, side=()):
    o = []; side = list(side)
    for j0 in range(0, 8, 2):
        if t == 6:
            base = tmp + 4 * j0
            o += [valu("v_accvgpr_read_b32", v(base + i), a(aO6 + 4 * j0 + i)) for i in range(8)]
        else:
            base = 32 * t + 4 * j0
        o += scale_pack(t, base, 2)
        o += [dswrite("ds_write_b64", oaddr(j0 + b), v(base + 4 * b, 2), 4096 * slot) for b in range(2)]
        if side: o += side.pop(0)
    return o

def red_put():
    w = [dswrite("ds_write_b128", v(vStb), a(aO6 + 4 * j, 4), 1024 * j) for j in range(8)]
    pre_ = [valu("v_lshrrev_b32", v(vMn), 2, v(vLin)), valu("v_and_b32", v(vMx), 255, v(vMn)), valu("v_lshrrev_b32", v(vMn), 9, v(vMn)),
            valu("v_lshl_add_u32", v(vMn), v(vMn), 8, v(vMx)), valu("v_add_u32", v(vMn), LSUM, v(vMn)), valu("v_add_u32", v(vMx), LSUM, v(vMx)),
            dswrite("ds_write_b32", v(vMn), a(aL + 24), 0)]
    return pre_, pairs(w)
def red_get(tmp):
    o = [valu("v_add_u32", v(vMn), STG0, v(vLin)), valu("v_add_u32", v(vTMP + 4), STG0 + 2 * STGW, v(vLin))]
    for w in range(4):
        ad = v(vMn) if w < 2 else v(vTMP + 4)
        o += [dsread("ds_read_b128", v(tmp + 8 * w + 4 * b, 4), ad, (w & 1) * STGW + 1024 * b) for b in range(2)]
    o += [dsread("ds_read_b32", v(vTMP + w), v(vMx), 256 * w) for w in range(4)]
    return o
def red_fin(tmp, soff):
    o = [valu("v_add_f32", v(vTMP), v(vTMP), v(vTMP + 1)), valu("v_add_f32", v(vTMP + 2), v(vTMP + 2), v(vTMP + 3)),
         valu("v_add_f32", v(vRc + 6), v(vTMP), v(vTMP + 2))]
    o += l_six()
    for x, y in ((0, 1), (2, 3), (0, 2)):
        o += [valu("v_pk_add_f32", v(tmp + 8 * x + 2 * i, 2), v(tmp + 8 * x + 2 * i, 2), v(tmp + 8 * y + 2 * i, 2)) for i in range(4)]
    o += scale_pack(6, tmp, 2)
    o += [salu("s_lshl_b32", sT2, sW, 6), salu("s_add_u32", sT2, sT2, soff)]
    o += [bstore(v(tmp + 4 * b, 2), v(vFr), SO, sT2, 32 * b, OPT["o"], op="buffer_store_dwordx2") for b in range(2)]
    return o

def next_bases():
    return [salu("s_add_u32", sHead, sHead, HEAD_Q),
            salu("s_add_u32", sNx0, sHead, sE0), salu("s_add_u32", sNx6, sHead, sE6),
            salu("s_mov_b32", sT0, sE0), salu("s_mov_b32", sE0, sF0), salu("s_mov_b32", sF0, sT0),
            salu("s_mov_b32", sT0, sE6), salu("s_mov_b32", sE6, sF6), salu("s_mov_b32", sF6, sT0)]

def head0(role):
    g = softmax_groups()[:HEAD0]
    if role == "A": return spaced(flat(g)) + [salu("s_mov_b32", sCnt, 3), wait(lgkm=0)]
    z = v(vTMP + 4, 4)
    zs = [mfma(a(aO6 + 4 * j, 4), z, z, 0) for j in range(8)] + [mfma(a(aL + 24, 4), z, z, 0)]
    return [valu("v_mov_b32", v(vTMP + 4 + i), 0) for i in range(4)] + g[0] + weave(zs, g[1:], [salu("s_mov_b32", sCnt, 14)]) + [wait(lgkm=0)]
def enter_b():
    o = []
    for w in (1, 2, 3): o += [scmp("s_cmp_eq_u32", sW, w), branch("s_cbranch_scc1", f"L_fb{w}")]
    return o

def boundary(prev):
    o = [wait(vm=8)] + qreads(0)
    bo = q6bounce(0); tl = softmax_groups()[HEADL:]
    for i, g in enumerate(tl):
        o += g
        if i in (0, 2, 4, 5): o.append(bo.pop(0))
    o += qreads(6, 0)
    sal = [salu("s_mov_b32", "s18", QBYTES), salu("s_mov_b32", sO, sCur0), salu("s_mov_b32", sT1, sCur6),
           salu("s_mov_b32", sCur0, sNx0), salu("s_mov_b32", sCur6, sNx6)] + next_bases() + \
          [salu("s_mov_b32", sQ, sNx0), salu("s_mov_b32", sSM, sStg)]
    q1, q2 = qreads(1), qreads(2)
    o += weave([summ(5, False)] + [pv(5, j, False) for j in range(8)],
               [[]] + [vread(j) for j in range(4)] + [q1[:3], q1[3:], q2[:3], q2[3:]], sal[:1])
    o.append(wait(lgkm=14))
    lg, fl = l_own()
    o += weave([qk(0, i) for i in range(8)], lg[:8], sal[1:9])
    for g, s_ in zip(lg[8:], sal[9:15]): o += g + [s_]
    o += sal[15:] + fl + [scmp("s_cmp_eq_u32", sRound, 1), salu("s_cselect_b32", "s14", 0, "s14"), valu("v_mov_b32", v(vSt), v(vStb))]
    ql = [[x] for x in q6loads(sNx6)]
    if prev == "A":
        o += [valu("v_accvgpr_read_b32", v(vRc + 6), a(aL + 24))] + l_six()
        o += epi(1, 1, side=ql)
        o += epi(6, 0, tmp=32) + readback(0, 32) + qreads(3)
        o += epi(2, 2)
        o += [wait(lgkm=8)] + epi(0, 0, side=[[x] for x in stores(32, sT1)]) + qreads(4)
        o += epi(3, 3) + [wait(vm=8)] + qreads(5) + epi(4, 4) + epi(5, 5)
    else:
        p0, pw = red_put()
        o += p0 + epi(2, 2, side=pw) + qreads(3) + [wait(lgkm=4), barrier()] + red_get(64)
        o += epi(3, 3, side=ql) + qreads(4) + [wait(lgkm=12), barrier()]
        o += red_fin(64, sT1)
        o += epi(0, 0) + epi(1, 1) + [wait(vm=6)] + qreads(5) + epi(4, 4) + epi(5, 5)
    o += [reset("q")]
    return o

def tail(prev):
    o = spaced(flat(softmax_groups()[HEADL:])) + [salu("s_mov_b32", "s18", QBYTES), wait(vm=0)]
    lg, fl = l_own()
    o += [summ(5, False)] + [pv(5, j, False) for j in range(8)] + spaced(flat(lg)) + fl
    def st(t): return [[salu("s_add_u32", sT1, sCur0, 4096 * t)] + stores(32 * t, sT1)[:1]] + [[x] for x in stores(32 * t, sT1)[1:]]
    if prev == "A":
        o += [valu("v_accvgpr_read_b32", v(vRc + 6), a(aL + 24))] + l_six()
        o += epi(1, 1) + readback(1, 32) + epi(0, 0) + readback(0, 0)
        seq = [1, 0, 2, 3, 4, 5]
        for i in range(2, 6): o += [wait(lgkm=12)] + epi(seq[i], seq[i], side=st(seq[i - 2])) + readback(seq[i], 32 * seq[i])
        o += [wait(lgkm=12)] + epi(6, 0, tmp=32, side=st(4)) + readback(0, 32)
        o += [wait(lgkm=12)] + flat(st(5)) + [wait(lgkm=0)] + stores(32, sCur6)
    else:
        p0, pw = red_put()
        o += p0 + epi(2, 2, side=pw) + readback(2, 64) + [wait(lgkm=4), barrier()]
        o += epi(3, 3) + readback(3, 96) + [wait(lgkm=12)] + epi(4, 4, side=st(2)) + red_get(64) + [wait(lgkm=12)]
        o += flat(st(3)) + readback(4, 128) + [wait(lgkm=4), barrier()]
        o += red_fin(64, sCur6)
        o += [wait(lgkm=0)] + epi(5, 5, side=st(4)) + readback(5, 160) + epi(0, 0) + readback(0, 0)
        o += [wait(lgkm=12)] + epi(1, 1, side=st(5)) + readback(1, 32) + [wait(lgkm=12)] + flat(st(0)) + [wait(lgkm=0)] + flat(st(1))
    return o

def role_bases():
    return [salu("s_mul_i32", sE0, sW, 7 * 4096), salu("s_add_u32", sE6, sE0, 6 * 4096),
            salu("s_mul_i32", sF0, sW, 6 * 4096), salu("s_add_u32", sF0, sF0, 448 * 256), salu("s_mov_b32", sF6, 832 * 256),
            scmp("s_cmp_eq_u32", sRole, 0),
            salu("s_cselect_b32", sT0, sE0, sF0), salu("s_cselect_b32", sF0, sF0, sE0), salu("s_mov_b32", sE0, sT0),
            salu("s_cselect_b32", sT0, sE6, sF6), salu("s_cselect_b32", sF6, sF6, sE6), salu("s_mov_b32", sE6, sT0),
            salu("s_mul_i32", sHead, sPair, 4 * HEAD_Q), salu("s_sub_u32", sHead, sHead, HEAD_Q)]

def prologue():
    c = math.log2(math.e) / math.sqrt(128.0)
    L, G, Rw, X, Y, Z = (vTMP + i for i in range(6))
    o = [scmp("s_cmp_ge_u32", "s2", 256), branch("s_cbranch_scc1", "L_end")] + dbg_begin()
    o += [raw("s_load_dwordx4 s[20:23], s[0:1], 0", "smem", (), regs("s[20:23]")),
          raw("s_load_dwordx4 s[24:27], s[0:1], 16", "smem", (), regs("s[24:27]")),
          valu("v_lshrrev_b32", v(X), 6, "v0"), valu("v_and_b32", v(L), 63, "v0"),
          valu("v_readfirstlane_b32", sW, v(X)),
          valu("v_lshrrev_b32", v(G), 4, v(L)), valu("v_and_b32", v(Rw), 15, v(L)),
          salu("s_lshr_b32", sT0, "s2", 4), salu("s_lshl_b32", sT0, sT0, 3), salu("s_and_b32", sT1, "s2", 7),
          salu("s_add_u32", sPair, sT0, sT1), salu("s_bfe_u32", sRole, "s2", "0x10003")]
    if OPT.get("adj"): o += [salu("s_lshr_b32", sPair, "s2", 1), salu("s_and_b32", sRole, "s2", 1)]
    o += [
          salu("s_mul_i32", sW2112, sW, 2 * PITCH), salu("s_add_u32", sTop, sW2112, 2 * SLOT),
          salu("s_mul_i32", sStg, sW, STGW), salu("s_add_u32", sStg, sStg, STG0)]
    o += role_bases()
    o += next_bases() + [salu("s_mov_b32", sCur0, sNx0), salu("s_mov_b32", sCur6, sNx6)] + next_bases()
    o += [comment("vLin = lane*16 + wave*2048, vStb = lane*16 + staging base"),
          valu("v_lshlrev_b32", v(Y), 4, v(L)), valu("v_add_u32", v(vStb), sStg, v(Y)),
          valu("v_lshl_add_u32", v(vLin), v(X), 11, v(Y)),
          comment("vSw0/1 = g*256 + ((lane&15) ^ s(rho))*16, rho = g (+4), s(rho) = rho | (rho&1)<<3"),
          valu("v_and_b32", v(Y), 1, v(G)), valu("v_lshl_add_u32", v(Y), v(Y), 3, v(G)),
          valu("v_xor_b32", v(Y), v(Y), v(Rw)), valu("v_lshlrev_b32", v(Y), 4, v(Y)),
          valu("v_lshl_add_u32", v(vSw0), v(G), 8, v(Y)), valu("v_xor_b32", v(vSw1), 64, v(vSw0))]
    o += [wait(lgkm=0),
          salu("s_lshl_b32", sT0, sPair, 19),
          salu("s_add_u32", "s4", "s22", sT0), salu("s_addc_u32", "s5", "s23", 0), salu("s_mov_b32", "s6", 4 * HEAD_KV), salu("s_mov_b32", "s7", "0x20000"),
          salu("s_add_u32", "s8", "s24", sT0), salu("s_addc_u32", "s9", "s25", 0), salu("s_mov_b32", "s10", 4 * HEAD_KV), salu("s_mov_b32", "s11", "0x20000"),
          salu("s_mov_b32", "s12", "s20"), salu("s_mov_b32", "s13", "s21"), salu("s_mov_b32", "s14", QBYTES), salu("s_mov_b32", "s15", "0x20000"),
          salu("s_mov_b32", "s16", "s26"), salu("s_mov_b32", "s17", "s27"), salu("s_mov_b32", "s18", 0), salu("s_mov_b32", "s19", "0x20000")]
    o += stamp_init()
    kvf, qf = OPT["kv"], OPT["q"]
    def kv(srd, blk, voff):
        sl = (2 - blk) * SLOT + voff
        return [salu("s_add_u32", "m0", sW2112, sl), salu("s_mov_b32", sT0, blk * 8192), dma(v(vLin), srd, sT0, 0, kvf, "kv"),
                salu("s_add_u32", "m0", sW2112, sl + 32), nop(0), dma(v(vLin), srd, sT0, 1024, kvf, "kv")]
    def qd(t):
        return [salu("s_add_u32", "m0", sStg, 4096 * t), salu("s_add_u32", sT0, sCur0, 4096 * t)] + \
               [dma(v(vSw1 if n & 1 else vSw0), SQ, sT0, 1024 * n, qf, "q") for n in range(4)]
    o += kv(SK, 0, 0) + qd(0) + kv(SV, 0, BLK) + q6loads(sCur6)
    for t in range(1, 6): o += qd(t)
    o += kv(SK, 1, 0) + kv(SV, 1, BLK) + kv(SK, 2, 0) + kv(SV, 2, BLK)
    o += [comment("staging: Q fragment row*256 + (g ^ s)*16, O write row*256 + ((g>>1) ^ s)*16 + (g&1)*8; vFr = row*256 + g*8"),
          valu("v_and_b32", v(Y), 1, v(Rw)), valu("v_and_b32", v(Z), 7, v(Rw)), valu("v_lshl_add_u32", v(Y), v(Y), 3, v(Z)),
          valu("v_lshlrev_b32", v(Z), 8, v(Rw)), valu("v_lshl_add_u32", v(vFr), v(G), 3, v(Z)), valu("v_add_u32", v(Z), sStg, v(Z)),
          valu("v_xor_b32", v(X), v(Y), v(G)), valu("v_lshl_add_u32", v(vQa), v(X), 4, v(Z)),
          valu("v_lshrrev_b32", v(X), 1, v(G)), valu("v_xor_b32", v(X), v(Y), v(X)), valu("v_lshl_add_u32", v(vOw), v(X), 4, v(Z)),
          valu("v_and_b32", v(X), 1, v(G)), valu("v_lshl_add_u32", v(vOw), v(X), 3, v(vOw)),
          comment("ring: K piece row&7, line row>>3, chunk g; V piece (lane>>2)&7, line lane>>5, 8-byte chunk lane&3"),
          salu("s_mov_b32", sT0, PITCH),
          valu("v_and_b32", v(X), 7, v(Rw)), valu("v_mul_lo_u32", v(X), v(X), sT0),
          valu("v_lshrrev_b32", v(Y), 3, v(Rw)), valu("v_lshl_add_u32", v(X), v(Y), 8, v(X)),
          valu("v_lshl_add_u32", v(X), v(G), 4, v(X)), valu("v_subrev_u32", v(vKb), sW2112, v(X)),
          valu("v_bfe_u32", v(X), v(L), 2, 3), valu("v_mul_lo_u32", v(X), v(X), sT0),
          valu("v_lshrrev_b32", v(Y), 5, v(L)), valu("v_lshl_add_u32", v(X), v(Y), 8, v(X)),
          valu("v_and_b32", v(Y), 3, v(L)), valu("v_lshl_add_u32", v(X), v(Y), 3, v(X)),
          valu("v_subrev_u32", v(vVb), sW2112, v(X)),
          valu("v_add_u32", v(vK), sTop, v(vKb)), valu("v_add_u32", v(vV), sTop, v(vVb)),
          comment("row-sum operand: ones in rows 0,4,8,12"),
          valu("v_mov_b32", v(X), "0x3f803f80"), valu("v_cmp_eq_u32", "vcc", 0, v(Y)), nop(1),
          valu("v_cndmask_b32", v(X), 0, v(X), "vcc")]
    o += [valu("v_accvgpr_write_b32", a(aONE + i), v(X)) for i in range(4)]
    o += [salu("s_mov_b32", sC, hex(fbits(c))), salu("s_mov_b32", sRd, sTop), salu("s_mov_b32", sKV, 3 * 8192),
          salu("s_mov_b32", sQ, sNx0), salu("s_mov_b32", sO, 0), salu("s_mov_b32", sSM, sStg),
          salu("s_mov_b32", sRound, 4), salu("s_mov_b32", sFlag, 0),
          salu("s_mov_b32", sLo, hex(L_LO)), salu("s_mov_b32", sSpan, hex(L_HI - L_LO)),
          valu("v_mov_b32", v(vSt), v(vStb))]
    o += [valu("v_xor_b32", v(vQx + ks - 1), 64 * ks, v(vQa)) for ks in (1, 2, 3)]
    o += [valu("v_xor_b32", v(vOx + j - 1), 32 * j, v(vOw)) for j in range(1, 8)]
    o += [wait(vm=28), need("kv", 4), barrier()]
    o += [kread(i) for i in range(8)] + qreads(0) + [wait(lgkm=0)]
    o += weave([qk(0, i) for i in range(8)], [vread(j) for j in range(4)] + [[x] for x in q6bounce(0)])
    o += qreads(6, 0) + [wait(vm=8)] + stamp()
    for t in range(1, 6): o += qreads(t)
    o += q6loads(sNx6) + [reset("q")]
    return o

def slow():
    Q, S, P, O, K, V, Lr = 0, 16, 24, 32, 64, 96, 128
    M, M2, AK, AV, AL, AQ = 132, 133, 134, 135, 136, 137
    o = [label("L_slow"), wait(vm=0, lgkm=0), salu("s_mov_b32", "s14", QBYTES)] + role_bases()
    o += [salu("s_add_u32", sT0, sStg, sW2112), valu("v_add_u32", v(AK), sT0, v(vKb)), valu("v_add_u32", v(AV), sT0, v(vVb)),
          valu("v_and_b32", v(AL), 1023, v(vLin)), valu("v_and_b32", v(AQ), 255, v(vFr)), valu("v_add_u32", v(AQ), v(AQ), v(vFr)),
          salu("s_mov_b32", sRound, 0),
          label("L_sround")] + next_bases() + [salu("s_mov_b32", sI, 0),
          label("L_ssub"),
          scmp("s_cmp_eq_u32", sI, 6), salu("s_cselect_b32", sT1, 6, 7), salu("s_lshl_b32", sT0, sRound, 1), salu("s_sub_u32", sT1, sT1, sT0),
          scmp("s_bitcmp1_b32", sFlag, sT1), branch("s_cbranch_scc0", "L_snext"),
          salu("s_lshl_b32", sT0, sI, 12), salu("s_add_u32", sO, sNx0, sT0), scmp("s_cmp_eq_u32", sI, 6), salu("s_cselect_b32", sO, sNx6, sO)]
    o += [bload(v(Q + 4 * ks, 4), v(AQ), SQ, sO, 64 * ks) for ks in range(4)]
    def fetch(srd, off):
        r = []
        for n in range(8):
            r += [salu("s_add_u32", "m0", sStg, off + PITCH * n), salu("s_add_u32", sT0, sKV, 1024 * n), dma(v(AL), srd, sT0)]
        return r
    kr = [dsread("ds_read_b128", v(K + 4 * i, 4), v(AK), (i >> 2) * 512 + (i & 3) * 64) for i in range(8)]
    qks = [mfma(v(S + 4 * (i >> 2), 4), v(K + 4 * i, 4), v(Q + 4 * (i & 3), 4), 0 if i & 3 == 0 else v(S + 4 * (i >> 2), 4)) for i in range(8)]
    loop = lambda lab: [salu("s_add_u32", sKV, sKV, 8192), salu("s_add_u32", sJ, sJ, 1), scmp("s_cmp_lt_u32", sJ, 16), branch("s_cbranch_scc1", lab)]
    start = [salu("s_lshl_b32", sKV, sRound, 17), salu("s_mov_b32", sJ, 0)]
    o += [valu("v_mov_b32", v(M), "0xff800000")] + start + [label("L_smax")]
    o += fetch(SK, 0) + [wait(vm=0)] + kr + [wait(lgkm=0)] + qks + [nop(8)]
    o += [valu("v_max3_f32", v(M), v(M), v(S + 2 * i), v(S + 2 * i + 1)) for i in range(4)] + loop("L_smax")
    for sw in ("v_permlane32_swap_b32", "v_permlane16_swap_b32"):
        o += [valu("v_mov_b32", v(M2), v(M)), nop(1), I(f"{sw} v{M}, v{M2}", "valu", [f"v{M}", f"v{M2}"], [f"v{M}", f"v{M2}"]), nop(1),
              valu("v_max_f32", v(M), v(M), v(M2))]
    o += [valu("v_mov_b32", v(O + i), 0) for i in range(32)] + [valu("v_mov_b32", v(Lr + i), 0) for i in range(4)]
    o += start + [label("L_spv")]
    o += fetch(SK, 0) + fetch(SV, BLK) + [wait(vm=0)] + kr + [wait(lgkm=0)]
    o += [dsread("ds_read_b64_tr_b16", v(V + 4 * j + 2 * hb, 2), v(AV), BLK + hb * 512 + j * 32) for j in range(8) for hb in (0, 1)]
    o += qks + [nop(8)]
    o += [valu("v_sub_f32", v(S + i), v(S + i), v(M)) for i in range(8)] + [valu("v_mul_f32", v(S + i), sC, v(S + i)) for i in range(8)]
    o += [valu("v_exp_f32", v(S + i), v(S + i)) for i in range(8)] + [nop(0)]
    o += [valu("v_cvt_pk_bf16_f32", v(P + i), v(S + 2 * i), v(S + 2 * i + 1)) for i in range(4)] + [wait(lgkm=0), nop(1)]
    o += [mfma(v(Lr, 4), a(aONE, 4), v(P, 4), v(Lr, 4))] + [mfma(v(O + 4 * j, 4), v(V + 4 * j, 4), v(P, 4), v(O + 4 * j, 4)) for j in range(8)]
    o += loop("L_spv") + [nop(8), valu("v_rcp_f32", v(Lr), v(Lr)), nop(0)]
    o += [valu("v_mul_f32", v(O + i), v(O + i), v(Lr)) for i in range(32)]
    for j in range(8):
        o += [valu("v_cvt_pk_bf16_f32", v(O + 4 * j + i), v(O + 4 * j + 2 * i), v(O + 4 * j + 2 * i + 1)) for i in range(2)]
    o += [bstore(v(O + 4 * j, 2), v(vFr), SO, sO, 32 * j, op="buffer_store_dwordx2") for j in range(8)] + [wait(vm=0)]
    o += [label("L_snext"), salu("s_add_u32", sI, sI, 1), scmp("s_cmp_lt_u32", sI, 7), branch("s_cbranch_scc1", "L_ssub"),
          salu("s_add_u32", sRound, sRound, 1), scmp("s_cmp_lt_u32", sRound, 4), branch("s_cbranch_scc1", "L_sround")]
    return o

def build():
    VA = {0: 8, 1: 8, 2: 12, 3: 12}
    FA = step(ORDER7, True, plan_a(True), 8)
    PA = {p: step(ORDER7, False, plan_a(p != 3), VA[p], "L_exitA" if p == 3 else None) for p in range(4)}
    VB = {0: 11, 1: 7, 2: 9, 3: 13}; VFB = {0: 8, 1: 8, 2: 9, 3: 9}
    ordb = lambda p: ORDER7 if p == 0 else ORDER6
    FB = {p: step(ordb(p), True, plan_b(p), VFB[p], zero6=False) for p in range(4)}
    PB = {p: step(ordb(p), False, plan_b(p), VB[p], "L_exitB") for p in range(4)}
    if OPT.get("verbose"):
        print("A steps", [PA[p][3] for p in range(4)], file=sys.stderr)
        print("B steps", [PB[p][3] for p in range(4)], "barrier intervals", [PB[p][3] - PB[p][2] + PB[(p + 1) % 4][2] for p in range(4)], file=sys.stderr)
    both = lambda s_: s_[0] + s_[1]
    jump = lambda l: [branch("s_branch", l)]
    pro = prologue()
    sel = [scmp("s_cmp_eq_u32", sRole, 0), branch("s_cbranch_scc1", "L_headA"), branch("s_branch", "L_headB")]
    ex = lambda r: stamp() + [salu("s_sub_u32", sRound, sRound, 1), scmp("s_cmp_eq_u32", sRound, 0), branch("s_cbranch_scc1", f"L_tail{r}")]
    exA, exB, bA, bB, hA, hB, tA, tB = ex("A"), ex("B"), boundary("A"), boundary("B"), head0("A") + stamp(), head0("B") + stamp(), tail("A"), tail("B")
    fin = stamp() + ([wait(vm=0)] + stamp() if OPT["stamps"] else []) + dbg_end() + \
        [scmp("s_cmp_eq_u32", sFlag, 0), branch("s_cbranch_scc1", "L_end")]
    sl = slow()
    prog = pro + sel
    prog += [label("L_exitB")] + exB + bB + [label("L_headA")] + hA + both(FA)
    prog += [label("L_pa1")] + both(PA[1]) + both(PA[2]) + both(PA[3]) + both(PA[0]) + jump("L_pa1")
    prog += [label("L_exitA")] + exA + bA + [label("L_headB")] + hB + enter_b() + both(FB[0])
    prog += [label("L_pb1")] + both(PB[1]) + [label("L_pb2")] + both(PB[2]) + [label("L_pb3")] + both(PB[3]) + [label("L_pb0")] + both(PB[0]) + jump("L_pb1")
    for w in (1, 2, 3): prog += [label(f"L_fb{w}")] + both(FB[w]) + jump(f"L_pb{(w + 1) % 4}")
    prog += [label("L_tailB")] + tB + jump("L_fin") + [label("L_tailA")] + tA + [label("L_fin")] + fin + sl + [label("L_end"), raw("s_endpgm")]
    errs = check(sl, "slow")
    for w in range(4):
        ra = hA + both(FA) + flat(both(PA[j % 4]) for j in range(1, 15)) + PA[3][0] + exA
        rb = hB + enter_b() + both(FB[w]) + flat(both(PB[(w + j) % 4]) for j in range(1, 15)) + PB[(w + 15) % 4][0] + exB
        errs += check(pro + sel + ra + bA + rb + bB + ra + bA + rb + tB + fin, f"AB w{w}")
        errs += check(pro + sel + rb + bB + ra + bA + rb + bB + ra + tA + fin, f"BA w{w}")
    errs = list(dict.fromkeys(errs))
    for e in errs[:40]: print("CHECK:", e, file=sys.stderr)
    return prog, errs

HEADER = """; Attention forward, B=16 H=32 Sq=848 Sk=512 D=128, bf16 (written by the generator gen/gen.py).
; One workgroup per CU, four heads per pair of workgroups. Per head one workgroup takes rows 0..447 (round A: 7 x 16 rows
; @launch grid=(256,1,1) block=(256,1,1) lds=%d
.amdgcn_target "amdgcn-amd-amdhsa--gfx950"
.text
.globl %s
.p2align 8
.type %s,@function
%s:
"""
FOOTER = """.section .rodata,"a"
.p2align 6
.amdhsa_kernel %s
  .amdhsa_next_free_vgpr 512
  .amdhsa_next_free_sgpr 96
  .amdhsa_accum_offset 256
  .amdhsa_group_segment_fixed_size 0
  .amdhsa_kernarg_size 48
  .amdhsa_user_sgpr_count 2
  .amdhsa_user_sgpr_kernarg_segment_ptr 1
  .amdhsa_system_sgpr_workgroup_id_x 1
  .amdhsa_float_denorm_mode_32 3
.end_amdhsa_kernel
"""

def emit(path):
    prog, errs = build()
    with open(path, "w") as f:
        f.write(HEADER % (LDS, KNAME, KNAME, KNAME))
        for x in prog:
            if x.text: f.write(("" if x.text.endswith(":") else "    ") + x.text + "\n")
        f.write(FOOTER % KNAME)
    return errs

if __name__ == "__main__":
    out = sys.argv[1]
    for kv in sys.argv[2:]:
        k, val = kv.split("=")
        OPT[k] = val.replace("+", " ")
    sys.exit(1 if emit(out) else 0)
```

```python
import sys, struct, math
from asmlib import *

KNAME = "standalone__gqa_softmax__near_ridge_kernel"
OPT = dict(kv="nt", q="nt", o="nt", stamps=False)

HEAD_Q = 848 * 256
HEAD_KV = 512 * 256
QBYTES = 512 * HEAD_Q
PITCH = 1056
BLK = 8 * PITCH
SLOT = 2 * BLK
STG0 = 3 * SLOT
STGW = 6 * 4096
LSUM = STG0 + 4 * STGW
LDS = LSUM + 1024
ORDER7 = [0, 1, 2, 6, 3, 4, 5]
ORDER6 = [0, 1, 2, 3, 4, 5]

vS, vT, vP = 192, 200, 208
vK, vV, vKb, vVb, vSt, vLin, vSw0, vSw1, vQa, vOw, vFr, vStb = range(212, 224)
vTMP = 224
vQx = 232
vOx = 235
vRc = 242
vMx, vMn, vQ6 = 250, 251, 255
aQ, aQ6n, aK, aV, aL, aONE, aO6 = 0, 112, 128, 160, 192, 220, 224
SK, SV, SQ, SO = "s[4:7]", "s[8:11]", "s[12:15]", "s[16:19]"
(sW, sC, sRd, sTop, sW2112, sKV, sQ, sO, sSM, sCnt, sRound, sCur0, sCur6, sNx0, sNx6,
 sE0, sE6, sF0, sF6, sHead, sFlag, sStg, sT0, sT1, sT2, sLo, sSpan, sPair, sRole, sI, sJ) = [f"s{i}" for i in range(28, 59)]

def v(i, n=1): return R("v", i, n)
def a(i, n=1): return R("a", i, n)
def Oreg(t, j): return a(aO6 + 4 * j, 4) if t == 6 else v(32 * t + 4 * j, 4)
def fbits(x): return struct.unpack("<I", struct.pack("<f", x))[0]
L_LO, L_HI = fbits(2.0 ** -24), fbits(2.0 ** 40)

def qk(t, i):
    hb, ks = i >> 2, i & 3
    d = v(vS + 4 * hb, 4)
    return mfma(d, a(aK + 4 * i, 4), a(aQ + 16 * t + 4 * ks, 4), 0 if ks == 0 else d)
def pv(t, j, first):
    d = Oreg(t, j)
    return mfma(d, a(aV + 4 * j, 4), v(vP, 4), 0 if first else d)
def summ(t, first):
    d = a(aL + 4 * t, 4)
    return mfma(d, a(aONE, 4), v(vP, 4), 0 if first else d)

def softmax_groups():
    m = lambda i: valu("v_mul_f32", v(vT + i), sC, v(vS + i))
    e = lambda i: valu("v_exp_f32", v(vT + i), v(vT + i))
    c = lambda i: valu("v_cvt_pk_bf16_f32", v(vP + i), v(vT + 2 * i), v(vT + 2 * i + 1))
    return [[m(0), m(1)], [e(0)], [e(1)], [m(2), m(3)], [e(2)], [m(4), m(5)], [e(3)], [m(6), m(7)],
            [e(4)], [e(5)], [c(0), c(1)], [e(6)], [e(7)], [c(2), c(3)]]
HEAD0, HEADL = 8, 7

def kread(i): return dsread("ds_read_b128", a(aK + 4 * i, 4), v(vK), (i >> 2) * 512 + (i & 3) * 64)
def vread(j): return [dsread("ds_read_b64_tr_b16", a(aV + 4 * j + 2 * hb, 2), v(vV), BLK + hb * 512 + j * 32) for hb in (0, 1)]

def gap_cost(ins):
    t = 4; prev = "mfma"
    for x in ins:
        k = x.kind
        if k in ("label", "need", "reset"): continue
        if k in VAL:
            if prev == "ds": t += 4
            t = max(t, 8) + (8 if k == "trans" else 4); prev = "valu"
        elif k == "dsr":
            if prev == "valu": t += 4
            t += 4; prev = "ds"
        else:
            if prev == "ds": t += 4
            t += {"dma": 12, "vst": 24, "barrier": 13, "branch": 8}.get(k, 4); prev = k
    if prev == "ds": t += 4
    return max(16, t)

class Stub(I):
    __slots__ = ("code", "skip", "name")
    n = 0
    def __init__(self, code, skip=()):
        Stub.n += 1
        self.name = f"L_stub{Stub.n}"; self.code = code; self.skip = list(skip)
        I.__init__(self, f"s_cbranch_vccnz {self.name}", "branch")
def expand(seq, mode):
    out = []; far = []
    for x in seq:
        if not isinstance(x, Stub): out.append(x); continue
        br = I(x.text, "branch")
        if mode == "emit":
            out += [br] + x.skip + [label(x.name + "r")]
            far += [label(x.name)] + x.code + [branch("s_branch", x.name + "r")]
        elif mode == "on": out += [br] + x.code + [I("s_branch", "branch")]
        else: out += [br] + x.skip
    return (out, far) if mode == "emit" else out

def step(order, first, plan, vmN, exit_label=None, zero6=True):
    n = len(order); NG = 17 * n
    at = lambda k, g: 17 * ((k - 1) % n) + g
    kvf, qf, of = OPT["kv"], OPT["q"], OPT["o"]
    job = "st0" in plan
    ops = {
        "bar": [wait(vm=vmN), need("kv", "step"), barrier()],
        "d0": [dma(v(vLin), SK, sKV, 0, kvf, "kv")], "d1": [dma(v(vLin), SK, sKV, 1024, kvf, "kv")],
        "d2": [dma(v(vLin), SV, sKV, 0, kvf, "kv")], "d3": [dma(v(vLin), SV, sKV, 1024, kvf, "kv")],
        "jr": [dsread("ds_read_b128", v(vTMP, 4), v(vSt), 0), dsread("ds_read_b128", v(vTMP + 4, 4), v(vSt), 1024)],
        "st0": [bstore(v(vTMP, 4), v(vSw0), SO, sO, 0, of)], "st1": [bstore(v(vTMP + 4, 4), v(vSw1), SO, sO, 1024, of)],
        "q0": [dma(v(vSw0), SQ, sQ, 0, qf, "q")], "q1": [dma(v(vSw1), SQ, sQ, 1024, qf, "q")],
        "upk": [valu("v_add_u32", v(vK), sRd, v(vKb))], "upv": [valu("v_add_u32", v(vV), sRd, v(vVb))],
        "ups": [valu("v_add_u32", v(vSt), 2048, v(vSt))],
        "last": [branch("s_cbranch_scc1", exit_label)] if exit_label else [],
    }
    for j in range(8): ops[f"v{j}"] = vread(j); ops[f"k{j}"] = [kread(j)]
    body = [[] for _ in range(NG)]; pre = [[] for _ in range(NG)]
    free = set(); extra = []; idx = {}
    for name, pos in plan.items():
        i = at(pos[0], pos[1]); idx[name] = i
        if len(pos) > 2: extra.append((i, ops[name]))
        else: free.add(i); body[i] += ops.get(name, [])
    for k in range(n):
        gaps = [at(k, g) for g in range(7, 17)] + [at(k + 1, g) for g in range(7)]
        nf = [sum(i in free for i in gaps[:10]), sum(i in free for i in gaps[10:])]
        assert sum(nf) == 3, (k, nf)
        if k == 0: assert 10 - nf[0] == HEAD0
        if k == n - 1: assert 10 - nf[0] == HEADL
        gs = softmax_groups()
        for i in gaps:
            if i not in free: body[i] += gs.pop(0)
    for i, ins in extra: body[i] += ins
    ms = [None] * NG
    for k in range(n):
        t, tp = order[k], order[k - 1]
        z = first and (tp != 6 or zero6)
        pvs = [pv(tp, j, z) for j in range(8)]
        seq = [qk(t, i) for i in range(8)] + ((pvs + [summ(tp, z)]) if k == 0 else ([summ(tp, z)] + pvs))
        for g in range(17): ms[at(k, g)] = seq[g]
    def can(i): return not pre[i] and (not body[i] or body[i][0].kind in VAL)
    def place(ins, lo, hi, latest=True):
        cand = [i for i in range(lo, hi) if can(i)]
        assert cand, (ins.text, lo, hi)
        i = cand[-1] if latest else cand[0]
        pre[i].append(ins); return i
    pend = [(-7, x) for j in range(4) for x in vread(j)]
    waits = []
    for i in range(NG):
        cons = [(ms[i], i)] + [(x, i) for x in body[i] if x.kind == "vst"]
        for y, _ in cons:
            hit = [p for p, (gi, x) in enumerate(pend) if x.wr & (y.rd | y.rdC)]
            if not hit: continue
            p = max(hit)
            cand = [h for h in range(max(pend[p][0] + 1, 0), i) if can(h)]
            assert cand, (y.text, i)
            h = cand[-1]
            while p + 1 < len(pend) and pend[p + 1][0] <= h - 6: p += 1
            pre[h].append(wait(lgkm=sum(1 for gi, x in pend[p + 1:] if gi < h)))
            pend = pend[p + 1:]
        pend += [(i, x) for x in body[i] if x.kind == "dsr"]
    m0 = {"d0": salu("s_mov_b32", "m0", sRd), "d1": salu("s_add_u32", "m0", sRd, 32),
          "d2": salu("s_add_u32", "m0", sRd, BLK), "d3": salu("s_add_u32", "m0", sRd, BLK + 32),
          "q0": salu("s_mov_b32", "m0", sSM), "q1": salu("s_mov_b32", "m0", sSM)}
    dm = sorted((idx[nm], nm) for nm in m0 if nm in idx)
    prev = (-1, None); m0pos = {}
    for i, nm in dm:
        if not (nm == "q1" and prev[1] == "q0"): m0pos[nm] = place(m0[nm], prev[0] + 1, i)
        prev = (i, nm)
    assert idx["bar"] < min(idx[d] for d in ("d0", "d1", "d2", "d3"))
    assert idx["bar"] > at(1, 14)
    lastd = max(idx[d] for d in ("d0", "d1", "d2", "d3"))
    up = min(idx["upk"], idx["upv"])
    cand = [i for i in range(max(m0pos[d] for d in ("d0", "d1", "d2", "d3")) + 1, up) if can(i)]
    pair = [(x, y) for x, y in zip(cand, cand[1:]) if all(not pre[z] or pre[z][0].kind == "wait" or pre[z][0].text.startswith("s_mov") for z in range(x, y))]
    x, y = pair[0]
    pre[x].append(salu("s_sub_u32", sRd, sRd, SLOT)); pre[y].append(salu("s_cselect_b32", sRd, sTop, sRd))
    lo = max(y, lastd) + 1
    hi = idx["last"]
    if exit_label: hi = place(salu("s_sub_u32", sCnt, sCnt, 1), lo, hi)
    place(salu("s_add_u32", sKV, sKV, 8192), lo, hi, False)
    if job:
        place(salu("s_add_u32", sO, sO, 2048), max(lo, idx["st1"] + 1), hi, False)
        place(salu("s_add_u32", sQ, sQ, 2048), max(lo, idx["q1"] + 1), hi, False)
        place(salu("s_add_u32", sSM, sSM, 2048), max(lo, idx["q1"] + 1), hi, False)
        assert idx["jr"] < idx["ups"] and idx["st0"] < idx["q0"] and idx["jr"] < idx["st0"]
    assert idx["upv"] > idx["v7"] and idx["upk"] < idx["k0"]
    if first:
        todo = [f"Q{t_}" for t_ in order[3:]] + ["KV2"] + ([] if n == 7 else ["Q6"])
        hist = list(PRO)
        sites = []
        for k in range(1, n - 1):
            i = at(k, 12)
            while not can(i) or x < i <= y: i -= 1
            sites.append((i, order[k + 1]))
        i = NG - 1
        while not can(i): i -= 1
        sites += [(i, None), (idx["bar"], "bar")]
        done = 0
        for i, t_ in sorted(sites, key=lambda z: z[0]):
            hist += ["x" for h in range(done, i) for z in body[h] if z.kind in ("dma", "vst")]; done = i
            after = lambda nm: sum(1 if z == "x" else 4 for z in hist[hist.index(nm) + 1:])
            if t_ == "bar":
                body[i][0] = Stub([wait(vm=after("KV1"))], [body[i][0]]); continue
            code = []
            while todo and (t_ is None or f"Q{t_}" not in hist or sum(z != "x" for z in hist[hist.index(f"Q{t_}") + 1:]) < int(OPT.get("ahead", 2))):
                hist.append(todo[0]); code += pro_load(todo.pop(0))
            if code: code = [salu("s_mov_b32", sT2, "m0")] + code + [salu("s_mov_b32", "m0", sT2)]
            last = [z for z in hist if z != "x"][-1]
            code.append(wait(vm=after(last if t_ is None else f"Q{t_}")))
            if t_ not in (None, 6): code += qreads(t_, tag="q0") + [wait(lgkm=0)]
            pre[i].append(Stub(code))
    out = []; t = 0; tb = None
    drop = OPT.get("drop", "").split()
    for i in range(NG):
        if i % 17 == 0:
            k = (i // 17 + 1) % n
            out.append(comment(f"slot {k}: QK subtile {order[k]}, PV subtile {order[k-1]}"))
        if i == 17 * (n - 1): cut = len(out) - 1
        if i == idx["bar"]: tb = t
        g = [x for x in pre[i] + body[i] if x.kind not in drop]
        out.append(ms[i]); out += g; t += gap_cost(g)
    return out[:cut], out[cut:], tb, t

PRO = ["KV0", "Q0", "Q1", "KV1", "Q2"]
def pro_load(x):
    n_ = int(x[-1]); o = []
    if x[0] == "K":
        for srd, off in ((SK, 0), (SV, BLK)):
            sl = (2 - n_) * SLOT + off
            o += [salu("s_add_u32", "m0", sW2112, sl), salu("s_mov_b32", sT0, n_ * 8192), dma(v(vLin), srd, sT0, 0, OPT["kv"], "kv"),
                  salu("s_add_u32", "m0", sW2112, sl + 32), nop(0), dma(v(vLin), srd, sT0, 1024, OPT["kv"], "kv")]
        return o
    if n_ == 6: return q6loads(sCur6)
    return [salu("s_add_u32", "m0", sStg, 4096 * n_), salu("s_add_u32", sT0, sCur0, 4096 * n_)] + \
           [dma(v(vSw1 if n & 1 else vSw0), SQ, sT0, 1024 * n, OPT["q"], "q0") for n in range(4)]

def vk_sites(n, v67=(7, 7)):
    L = n - 1
    return {"v0": (0, 10), "v1": (0, 10), "v2": (0, 14), "v3": (0, 14), "v4": (1, 1), "v5": (1, 1), "v6": (1, v67[0]), "v7": (1, v67[1]),
            "k0": (L, 1), "k1": (L, 1), "k2": (L, 5), "k3": (L, 5), "k4": (L, 8), "k5": (L, 8), "k6": (L, 11), "k7": (L, 11), "last": (L, 16)}

def plan_a(job):
    p = vk_sites(7)
    p.update({"bar": (2, 0), "d0": (2, 4), "d1": (2, 9), "d2": (2, 14), "d3": (3, 2), "upk": (3, 13), "upv": (3, 13)})
    if job: p.update({"jr": (3, 9), "st0": (4, 3), "st1": (4, 9), "q0": (4, 14), "q1": (5, 2), "ups": (5, 10)})
    else: p.update({"e0": (3, 9), "e1": (4, 3), "e2": (4, 9), "e3": (4, 14), "e4": (5, 2), "e5": (5, 10)})
    return p

def plan_b(p_):
    if p_ == 0:
        p = vk_sites(7, (7, 9))
        p.update({"e0": (2, 3), "bar": (2, 10), "d0": (2, 14), "d1": (3, 2), "d2": (3, 9), "d3": (3, 14), "e1": (4, 3),
                  "upk": (4, 9), "upv": (4, 9), "e2": (4, 14), "e3": (5, 2), "e4": (5, 10)})
        return p
    p = vk_sites(6)
    p["jr"] = (1, 7)
    if p_ == 1: p.update({"bar": (1, 15), "d0": (2, 3), "d1": (2, 8), "d2": (2, 13), "d3": (3, 1), "st0": (3, 8), "st1": (3, 13), "q0": (4, 1), "q1": (4, 9)})
    if p_ == 2: p.update({"st0": (1, 15), "bar": (2, 1), "d0": (2, 8), "d1": (2, 13), "d2": (3, 1), "d3": (3, 8), "st1": (3, 13), "q0": (4, 1), "q1": (4, 9)})
    if p_ == 3: p.update({"st0": (1, 15), "bar": (2, 5), "d0": (2, 9), "d1": (2, 13), "d2": (3, 1), "d3": (3, 8), "st1": (3, 13), "q0": (4, 1), "q1": (4, 9)})
    p.update({"upk": (4, 12, "x"), "upv": (4, 14, "x"), "ups": (4, 16, "x")})
    return p

def stamp():
    if not OPT["stamps"]: return []
    return [raw("s_memtime s[60:61]", "smem", (), regs("s[60:61]")), raw("s_memrealtime s[62:63]", "smem", (), regs("s[62:63]")),
            wait(lgkm=0), valu("v_mov_b32", "v252", "s60"), valu("v_mov_b32", "v253", "s62"), valu("v_mov_b32", "v254", 0),
            raw("s_mov_b64 exec, 1", "salu"),
            bstore("v[252:253]", "v254", "s[64:67]", "s68", op="buffer_store_dwordx2"),
            raw("s_mov_b64 exec, -1", "salu"), salu("s_add_u32", "s68", "s68", 8), nop(3)]
def stamp_init():
    if not OPT["stamps"]: return []
    return [raw("s_load_dwordx2 s[64:65], s[0:1], 40", "smem", (), regs("s[64:65]")), wait(lgkm=0),
            salu("s_mov_b32", "s66", 1 << 20), salu("s_mov_b32", "s67", "0x20000"),
            salu("s_lshl_b32", "s68", "s2", 2), salu("s_add_u32", "s68", "s68", sW), salu("s_lshl_b32", "s68", "s68", 8)] + stamp()
def dbg_begin():
    if not OPT.get("dbg"): return []
    return [raw("s_memtime s[70:71]", "smem", (), regs("s[70:71]")), raw("s_memrealtime s[72:73]", "smem", (), regs("s[72:73]")),
            raw("s_load_dwordx2 s[76:77], s[0:1], 32", "smem", (), regs("s[76:77]")), wait(lgkm=0),
            salu("s_mov_b32", "s78", 64), salu("s_mov_b32", "s79", "0x20000")]
def dbg_end():
    if not OPT.get("dbg"): return []
    return [wait(vm=0), raw("s_memtime s[60:61]", "smem", (), regs("s[60:61]")), raw("s_memrealtime s[62:63]", "smem", (), regs("s[62:63]")),
            wait(lgkm=0), salu("s_sub_u32", "s60", "s60", "s70"), salu("s_sub_u32", "s62", "s62", "s72"),
            salu("s_lshl_b32", "s61", sW, 8), salu("s_add_u32", "s61", "s61", "s2"), salu("s_lshl_b32", "s61", "s61", 3),
            valu("v_mov_b32", "v252", "s60"), valu("v_mov_b32", "v253", "s62"), valu("v_mov_b32", "v254", "s61"),
            raw("s_mov_b64 exec, 1", "salu"),
            bstore("v[252:253]", "v254", "s[76:79]", 0, op="buffer_store_dwordx2"), raw("s_mov_b64 exec, -1", "salu")]

def flat(gs): return [x for g in gs for x in g]
def spaced(seq):
    out = []
    for x in seq:
        if out and out[-1].kind == "trans" and x.kind == "valu" and out[-1].wr & x.rd: out.append(nop(0))
        out.append(x)
    return out
def weave(ms, fill, pres=()):
    out = []; fill = list(fill); pres = list(pres)
    for m_ in ms:
        out.append(m_)
        g = fill.pop(0) if fill else []
        if pres and (not g or g[0].kind in VAL): out.append(pres.pop(0))
        out += g
    return out + flat(fill) + pres
def pairs(seq): return [seq[i:i + 2] for i in range(0, len(seq), 2)]

def qaddr(ks): return v(vQa) if ks == 0 else v(vQx + ks - 1)
def oaddr(j): return v(vOw) if j == 0 else v(vOx + j - 1)
def qreads(t, slot=None, tag="q"):
    slot = t if slot is None else slot
    return ([need(tag, 4 * t + 4)] if t < 6 else []) + \
        [dsread("ds_read_b128", a(aQ + 16 * t + 4 * ks, 4), qaddr(ks), 4096 * slot) for ks in range(4)]
def q6bounce(slot): return [dswrite("ds_write_b128", v(vStb), a(aQ6n + 4 * n, 4), 4096 * slot + 1024 * n) for n in range(4)]
def q6loads(soff): return [bload(a(aQ + 96 + 4 * ks, 4), v(vQ6), SQ, soff, 64 * ks, OPT["q"]) for ks in range(4)]
def readback(slot, dst): return [dsread("ds_read_b128", v(dst + 4 * n, 4), v(vStb), 4096 * slot + 1024 * n) for n in range(4)]
def stores(src, soff): return [bstore(v(src + 4 * n, 4), v(vSw1 if n & 1 else vSw0), SO, soff, 1024 * n, OPT["o"]) for n in range(4)]

def flag(mask):
    return [salu("s_lshl_b32", sFlag, sFlag, 1), scmp("s_cmp_lg_u64", mask, 0), salu("s_addc_u32", sFlag, sFlag, 0)]
def l_own():
    r = lambda t: v(vRc + t)
    g = pairs([valu("v_accvgpr_read_b32", r(t), a(aL + 4 * t)) for t in range(6)])
    g += [[valu("v_max3_u32", v(vMx), r(0), r(1), r(2)), valu("v_min3_u32", v(vMn), r(0), r(1), r(2))],
          [valu("v_max3_u32", v(vMx), v(vMx), r(3), r(4)), valu("v_min3_u32", v(vMn), v(vMn), r(3), r(4))],
          [valu("v_max_u32", v(vMx), v(vMx), r(5)), valu("v_min_u32", v(vMn), v(vMn), r(5))],
          [valu("v_subrev_u32", v(vMx), sLo, v(vMx)), valu("v_subrev_u32", v(vMn), sLo, v(vMn))],
          [valu("v_max_u32", v(vMx), v(vMx), v(vMn)), valu("v_cmp_lt_u32", "vcc", sSpan, v(vMx))]]
    g += [[valu("v_rcp_f32", r(t), r(t))] for t in range(6)]
    return g, flag("vcc")
def l_six():
    r = v(vRc + 6)
    return [valu("v_subrev_u32", v(vMx), sLo, r), valu("v_cmp_lt_u32", "vcc", sSpan, v(vMx)), valu("v_rcp_f32", r, r), nop(1)] + flag("vcc")

def scale_pack(t, base, nblk):
    rp = v(vRc + (t & ~1), 2)
    mods = "op_sel_hi:[1,0]" if t % 2 == 0 else "op_sel:[0,1] op_sel_hi:[1,1]"
    o = [valu("v_pk_mul_f32", v(base + 2 * i, 2), v(base + 2 * i, 2), rp, mods=mods) for i in range(2 * nblk)]
    for b in range(nblk):
        o += [valu("v_cvt_pk_bf16_f32", v(base + 4 * b + i), v(base + 4 * b + 2 * i), v(base + 4 * b + 2 * i + 1)) for i in range(2)]
    return o
def epi(t, slot, tmp=None, side=()):
    o = []; side = list(side)
    for j0 in range(0, 8, 2):
        if t == 6:
            base = tmp + 4 * j0
            o += [valu("v_accvgpr_read_b32", v(base + i), a(aO6 + 4 * j0 + i)) for i in range(8)]
        else:
            base = 32 * t + 4 * j0
        o += scale_pack(t, base, 2)
        o += [dswrite("ds_write_b64", oaddr(j0 + b), v(base + 4 * b, 2), 4096 * slot) for b in range(2)]
        if side: o += side.pop(0)
    return o

def red_put():
    w = [dswrite("ds_write_b128", v(vStb), a(aO6 + 4 * j, 4), 1024 * j) for j in range(8)]
    pre_ = [valu("v_lshrrev_b32", v(vMn), 2, v(vLin)), valu("v_and_b32", v(vMx), 255, v(vMn)), valu("v_lshrrev_b32", v(vMn), 9, v(vMn)),
            valu("v_lshl_add_u32", v(vMn), v(vMn), 8, v(vMx)), valu("v_add_u32", v(vMn), LSUM, v(vMn)), valu("v_add_u32", v(vMx), LSUM, v(vMx)),
            dswrite("ds_write_b32", v(vMn), a(aL + 24), 0)]
    return pre_, pairs(w)
def red_get(tmp):
    o = [valu("v_add_u32", v(vMn), STG0, v(vLin)), valu("v_add_u32", v(vTMP + 4), STG0 + 2 * STGW, v(vLin))]
    for w in range(4):
        ad = v(vMn) if w < 2 else v(vTMP + 4)
        o += [dsread("ds_read_b128", v(tmp + 8 * w + 4 * b, 4), ad, (w & 1) * STGW + 1024 * b) for b in range(2)]
    o += [dsread("ds_read_b32", v(vTMP + w), v(vMx), 256 * w) for w in range(4)]
    return o
def red_fin(tmp, soff):
    o = [valu("v_add_f32", v(vTMP), v(vTMP), v(vTMP + 1)), valu("v_add_f32", v(vTMP + 2), v(vTMP + 2), v(vTMP + 3)),
         valu("v_add_f32", v(vRc + 6), v(vTMP), v(vTMP + 2))]
    o += l_six()
    for x, y in ((0, 1), (2, 3), (0, 2)):
        o += [valu("v_pk_add_f32", v(tmp + 8 * x + 2 * i, 2), v(tmp + 8 * x + 2 * i, 2), v(tmp + 8 * y + 2 * i, 2)) for i in range(4)]
    o += scale_pack(6, tmp, 2)
    o += [salu("s_lshl_b32", sT2, sW, 6), salu("s_add_u32", sT2, sT2, soff)]
    o += [bstore(v(tmp + 4 * b, 2), v(vFr), SO, sT2, 32 * b, OPT["o"], op="buffer_store_dwordx2") for b in range(2)]
    return o

def next_bases():
    return [salu("s_add_u32", sHead, sHead, HEAD_Q),
            salu("s_add_u32", sNx0, sHead, sE0), salu("s_add_u32", sNx6, sHead, sE6),
            salu("s_mov_b32", sT0, sE0), salu("s_mov_b32", sE0, sF0), salu("s_mov_b32", sF0, sT0),
            salu("s_mov_b32", sT0, sE6), salu("s_mov_b32", sE6, sF6), salu("s_mov_b32", sF6, sT0)]

def head0(role):
    g = softmax_groups()[:HEAD0]
    if role == "A": return spaced(flat(g)) + [salu("s_mov_b32", sCnt, 3), wait(lgkm=0)]
    z = v(vTMP + 4, 4)
    zs = [mfma(a(aO6 + 4 * j, 4), z, z, 0) for j in range(8)] + [mfma(a(aL + 24, 4), z, z, 0)]
    return [valu("v_mov_b32", v(vTMP + 4 + i), 0) for i in range(4)] + g[0] + weave(zs, g[1:], [salu("s_mov_b32", sCnt, 14)]) + [wait(lgkm=0)]
def enter_b():
    o = []
    for w in (1, 2, 3): o += [scmp("s_cmp_eq_u32", sW, w), branch("s_cbranch_scc1", f"L_fb{w}")]
    return o

def boundary(prev):
    ql = q6loads(sNx6)
    o = [wait(vm=8)] + [ql[0]] + qreads(0) + spaced(flat(softmax_groups()[HEADL:]))
    sal = [salu("s_mov_b32", "s18", QBYTES), salu("s_mov_b32", sO, sCur0), salu("s_mov_b32", sT1, sCur6),
           salu("s_mov_b32", sCur0, sNx0), salu("s_mov_b32", sCur6, sNx6)] + next_bases() + \
          [salu("s_mov_b32", sQ, sNx0), salu("s_mov_b32", sSM, sStg)]
    q1, q2 = qreads(1), qreads(2)
    o += [nop(1)] + weave([summ(5, False)] + [pv(5, j, False) for j in range(8)],
                          [q1[:3]] + [vread(j) for j in range(4)] + [q1[3:], q2[:3], q2[3:], [ql[1]]])
    o.append(wait(lgkm=14))
    ql = q6loads(sCur6)
    lg, fl = l_own()
    o += weave([qk(0, i) for i in range(8)], lg[:8], sal[:8])
    for g, s_ in zip(lg[8:], sal[8:14]): o += g + [s_]
    o += sal[14:] + fl + [valu("v_mov_b32", v(vSt), v(vStb)), ql[2]]
    dis = [scmp("s_cmp_eq_u32", sRound, 1), salu("s_cselect_b32", "s14", 0, "s14")]
    if prev == "A":
        o += [valu("v_accvgpr_read_b32", v(vRc + 6), a(aL + 24))] + l_six()
        o += epi(1, 1) + [ql[3]] + dis
        o += epi(6, 0, tmp=32) + readback(0, 32) + qreads(3)
        o += epi(2, 2)
        o += [wait(lgkm=8)] + epi(0, 0, side=[[x] for x in stores(32, sT1)]) + qreads(4)
        o += epi(3, 3) + [wait(vm=8)] + qreads(5) + epi(4, 4) + epi(5, 5)
    else:
        p0, pw = red_put()
        o += p0 + epi(2, 2, side=pw) + [ql[3]] + dis + qreads(3) + [wait(lgkm=4), barrier()] + red_get(64)
        o += epi(3, 3) + qreads(4) + [wait(lgkm=12), barrier()]
        o += red_fin(64, sT1)
        o += epi(0, 0) + epi(1, 1) + [wait(vm=6)] + qreads(5) + epi(4, 4) + epi(5, 5)
    o += [reset("q"), salu("s_mov_b64", "vcc", 0)]
    return o

def tail(prev):
    keep = OPT["o"]; OPT["o"] = OPT.get("ot", keep)
    o = tail_(prev); OPT["o"] = keep
    return o
def tail_(prev):
    o = spaced(flat(softmax_groups()[HEADL:])) + [salu("s_mov_b32", "s18", QBYTES), wait(vm=0)]
    lg, fl = l_own()
    o += [summ(5, False)] + [pv(5, j, False) for j in range(8)] + spaced(flat(lg)) + fl
    def st(t): return [[salu("s_add_u32", sT1, sCur0, 4096 * t)] + stores(32 * t, sT1)[:1]] + [[x] for x in stores(32 * t, sT1)[1:]]
    if prev == "A":
        o += [valu("v_accvgpr_read_b32", v(vRc + 6), a(aL + 24))] + l_six()
        o += epi(1, 1) + readback(1, 32) + epi(0, 0) + readback(0, 0)
        seq = [1, 0, 2, 3, 4, 5]
        for i in range(2, 6): o += [wait(lgkm=12)] + epi(seq[i], seq[i], side=st(seq[i - 2])) + readback(seq[i], 32 * seq[i])
        o += [wait(lgkm=12)] + epi(6, 0, tmp=32, side=st(4)) + readback(0, 32)
        o += [wait(lgkm=12)] + flat(st(5)) + [wait(lgkm=0)] + stores(32, sCur6)
    else:
        p0, pw = red_put()
        o += p0 + epi(2, 2, side=pw) + readback(2, 64) + [wait(lgkm=4), barrier()]
        o += epi(3, 3) + readback(3, 96) + [wait(lgkm=12)] + epi(4, 4, side=st(2)) + red_get(64) + [wait(lgkm=12)]
        o += flat(st(3)) + readback(4, 128) + [wait(lgkm=4), barrier()]
        o += red_fin(64, sCur6)
        o += [wait(lgkm=0)] + epi(5, 5, side=st(4)) + readback(5, 160) + epi(0, 0) + readback(0, 0)
        o += [wait(lgkm=12)] + epi(1, 1, side=st(5)) + readback(1, 32) + [wait(lgkm=12)] + flat(st(0)) + [wait(lgkm=0)] + flat(st(1))
    return o

def role_bases():
    return [salu("s_mul_i32", sE0, sW, 7 * 4096), salu("s_add_u32", sE6, sE0, 6 * 4096),
            salu("s_mul_i32", sF0, sW, 6 * 4096), salu("s_add_u32", sF0, sF0, 448 * 256), salu("s_mov_b32", sF6, 832 * 256),
            scmp("s_cmp_eq_u32", sRole, 0),
            salu("s_cselect_b32", sT0, sE0, sF0), salu("s_cselect_b32", sF0, sF0, sE0), salu("s_mov_b32", sE0, sT0),
            salu("s_cselect_b32", sT0, sE6, sF6), salu("s_cselect_b32", sF6, sF6, sE6), salu("s_mov_b32", sE6, sT0),
            salu("s_mul_i32", sHead, sPair, 4 * HEAD_Q), salu("s_sub_u32", sHead, sHead, HEAD_Q)]

def prologue():
    c = math.log2(math.e) / math.sqrt(128.0)
    L, G, Rw, X, Y, Z = (vTMP + i for i in range(6))
    o = [scmp("s_cmp_ge_u32", "s2", 256), branch("s_cbranch_scc1", "L_end")] + dbg_begin()
    o += [raw("s_load_dwordx4 s[20:23], s[0:1], 0", "smem", (), regs("s[20:23]")),
          raw("s_load_dwordx4 s[24:27], s[0:1], 16", "smem", (), regs("s[24:27]")),
          valu("v_lshrrev_b32", v(X), 6, "v0"), valu("v_and_b32", v(L), 63, "v0"),
          valu("v_readfirstlane_b32", sW, v(X)),
          valu("v_lshrrev_b32", v(G), 4, v(L)), valu("v_and_b32", v(Rw), 15, v(L)),
          salu("s_lshr_b32", sT0, "s2", 4), salu("s_lshl_b32", sT0, sT0, 3), salu("s_and_b32", sT1, "s2", 7),
          salu("s_add_u32", sPair, sT0, sT1), salu("s_bfe_u32", sRole, "s2", "0x10003")]
    if OPT.get("adj"): o += [salu("s_lshr_b32", sPair, "s2", 1), salu("s_and_b32", sRole, "s2", 1)]
    o += [
          salu("s_mul_i32", sW2112, sW, 2 * PITCH), salu("s_add_u32", sTop, sW2112, 2 * SLOT),
          salu("s_mul_i32", sStg, sW, STGW), salu("s_add_u32", sStg, sStg, STG0)]
    o += role_bases()
    o += next_bases() + [salu("s_mov_b32", sCur0, sNx0), salu("s_mov_b32", sCur6, sNx6)] + next_bases()
    o += [comment("vLin = lane*16 + wave*2048, vStb = lane*16 + staging base"),
          valu("v_lshlrev_b32", v(Y), 4, v(L)), valu("v_add_u32", v(vStb), sStg, v(Y)),
          valu("v_lshl_add_u32", v(vLin), v(X), 11, v(Y)),
          comment("vSw0/1 = g*256 + ((lane&15) ^ s(rho))*16, rho = g (+4), s(rho) = rho | (rho&1)<<3"),
          valu("v_and_b32", v(Y), 1, v(G)), valu("v_lshl_add_u32", v(Y), v(Y), 3, v(G)),
          valu("v_xor_b32", v(Y), v(Y), v(Rw)), valu("v_lshlrev_b32", v(Y), 4, v(Y)),
          valu("v_lshl_add_u32", v(vSw0), v(G), 8, v(Y)), valu("v_xor_b32", v(vSw1), 64, v(vSw0)),
          valu("v_lshlrev_b32", v(Y), 4, v(G)), valu("v_lshl_add_u32", v(vQ6), v(Rw), 8, v(Y))]
    o += [wait(lgkm=0),
          salu("s_lshl_b32", sT0, sPair, 19),
          salu("s_add_u32", "s4", "s22", sT0), salu("s_addc_u32", "s5", "s23", 0), salu("s_mov_b32", "s6", 4 * HEAD_KV), salu("s_mov_b32", "s7", "0x20000"),
          salu("s_add_u32", "s8", "s24", sT0), salu("s_addc_u32", "s9", "s25", 0), salu("s_mov_b32", "s10", 4 * HEAD_KV), salu("s_mov_b32", "s11", "0x20000"),
          salu("s_mov_b32", "s12", "s20"), salu("s_mov_b32", "s13", "s21"), salu("s_mov_b32", "s14", QBYTES), salu("s_mov_b32", "s15", "0x20000"),
          salu("s_mov_b32", "s16", "s26"), salu("s_mov_b32", "s17", "s27"), salu("s_mov_b32", "s18", 0), salu("s_mov_b32", "s19", "0x20000")]
    o += stamp_init()
    for x in PRO[:3]: o += pro_load(x)
    o += [comment("staging: Q fragment row*256 + (g ^ s)*16, O write row*256 + ((g>>1) ^ s)*16 + (g&1)*8; vFr = row*256 + g*8"),
          valu("v_and_b32", v(Y), 1, v(Rw)), valu("v_and_b32", v(Z), 7, v(Rw)), valu("v_lshl_add_u32", v(Y), v(Y), 3, v(Z)),
          valu("v_lshlrev_b32", v(Z), 8, v(Rw)), valu("v_lshl_add_u32", v(vFr), v(G), 3, v(Z)), valu("v_add_u32", v(Z), sStg, v(Z)),
          valu("v_xor_b32", v(X), v(Y), v(G)), valu("v_lshl_add_u32", v(vQa), v(X), 4, v(Z)),
          valu("v_lshrrev_b32", v(X), 1, v(G)), valu("v_xor_b32", v(X), v(Y), v(X)), valu("v_lshl_add_u32", v(vOw), v(X), 4, v(Z)),
          valu("v_and_b32", v(X), 1, v(G)), valu("v_lshl_add_u32", v(vOw), v(X), 3, v(vOw)),
          comment("ring: K piece row&7, line row>>3, chunk g; V piece (lane>>2)&7, line lane>>5, 8-byte chunk lane&3"),
          salu("s_mov_b32", sT0, PITCH),
          valu("v_and_b32", v(X), 7, v(Rw)), valu("v_mul_lo_u32", v(X), v(X), sT0),
          valu("v_lshrrev_b32", v(Y), 3, v(Rw)), valu("v_lshl_add_u32", v(X), v(Y), 8, v(X)),
          valu("v_lshl_add_u32", v(X), v(G), 4, v(X)), valu("v_subrev_u32", v(vKb), sW2112, v(X)),
          valu("v_bfe_u32", v(X), v(L), 2, 3), valu("v_mul_lo_u32", v(X), v(X), sT0),
          valu("v_lshrrev_b32", v(Y), 5, v(L)), valu("v_lshl_add_u32", v(X), v(Y), 8, v(X)),
          valu("v_and_b32", v(Y), 3, v(L)), valu("v_lshl_add_u32", v(X), v(Y), 3, v(X)),
          valu("v_subrev_u32", v(vVb), sW2112, v(X)),
          valu("v_add_u32", v(vK), sTop, v(vKb)), valu("v_add_u32", v(vV), sTop, v(vVb)),
          comment("row-sum operand: ones in rows 0,4,8,12"),
          valu("v_mov_b32", v(X), "0x3f803f80"), valu("v_cmp_eq_u32", "vcc", 0, v(Y)), nop(1),
          valu("v_cndmask_b32", v(X), 0, v(X), "vcc")]
    o += [valu("v_accvgpr_write_b32", a(aONE + i), v(X)) for i in range(4)]
    o += [salu("s_mov_b32", sC, hex(fbits(c))), salu("s_mov_b32", sRd, sTop), salu("s_mov_b32", sKV, 3 * 8192),
          salu("s_mov_b32", sQ, sNx0), salu("s_mov_b32", sO, 0), salu("s_mov_b32", sSM, sStg),
          salu("s_mov_b32", sRound, 4), salu("s_mov_b32", sFlag, 0),
          salu("s_mov_b32", sLo, hex(L_LO)), salu("s_mov_b32", sSpan, hex(L_HI - L_LO)),
          valu("v_mov_b32", v(vSt), v(vStb))]
    o += [valu("v_xor_b32", v(vQx + ks - 1), 64 * ks, v(vQa)) for ks in (1, 2, 3)]
    o += [valu("v_xor_b32", v(vOx + j - 1), 32 * j, v(vOw)) for j in range(1, 8)]
    o += pro_load(PRO[3])
    o += [salu("s_mov_b64", "vcc", -1), wait(vm=8), need("kv", 4), barrier()]
    o += [kread(i) for i in range(8)] + qreads(0, tag="q0") + pro_load(PRO[4]) + [wait(lgkm=0)]
    o += weave([qk(0, i) for i in range(8)], [vread(j) for j in range(4)])
    o += [wait(vm=8)] + qreads(1, tag="q0")
    return o

def slow():
    Q, S, P, O, K, V, Lr = 0, 16, 24, 32, 64, 96, 128
    M, M2, AK, AV, AL, AQ = 132, 133, 134, 135, 136, 137
    o = [label("L_slow"), wait(vm=0, lgkm=0), salu("s_mov_b32", "s14", QBYTES)] + role_bases()
    o += [salu("s_add_u32", sT0, sStg, sW2112), valu("v_add_u32", v(AK), sT0, v(vKb)), valu("v_add_u32", v(AV), sT0, v(vVb)),
          valu("v_and_b32", v(AL), 1023, v(vLin)), valu("v_mov_b32", v(AQ), v(vQ6)),
          salu("s_mov_b32", sRound, 0),
          label("L_sround")] + next_bases() + [salu("s_mov_b32", sI, 0),
          label("L_ssub"),
          scmp("s_cmp_eq_u32", sI, 6), salu("s_cselect_b32", sT1, 6, 7), salu("s_lshl_b32", sT0, sRound, 1), salu("s_sub_u32", sT1, sT1, sT0),
          scmp("s_bitcmp1_b32", sFlag, sT1), branch("s_cbranch_scc0", "L_snext"),
          salu("s_lshl_b32", sT0, sI, 12), salu("s_add_u32", sO, sNx0, sT0), scmp("s_cmp_eq_u32", sI, 6), salu("s_cselect_b32", sO, sNx6, sO)]
    o += [bload(v(Q + 4 * ks, 4), v(AQ), SQ, sO, 64 * ks) for ks in range(4)]
    def fetch(srd, off):
        r = []
        for n in range(8):
            r += [salu("s_add_u32", "m0", sStg, off + PITCH * n), salu("s_add_u32", sT0, sKV, 1024 * n), dma(v(AL), srd, sT0)]
        return r
    kr = [dsread("ds_read_b128", v(K + 4 * i, 4), v(AK), (i >> 2) * 512 + (i & 3) * 64) for i in range(8)]
    qks = [mfma(v(S + 4 * (i >> 2), 4), v(K + 4 * i, 4), v(Q + 4 * (i & 3), 4), 0 if i & 3 == 0 else v(S + 4 * (i >> 2), 4)) for i in range(8)]
    loop = lambda lab: [salu("s_add_u32", sKV, sKV, 8192), salu("s_add_u32", sJ, sJ, 1), scmp("s_cmp_lt_u32", sJ, 16), branch("s_cbranch_scc1", lab)]
    start = [salu("s_lshl_b32", sKV, sRound, 17), salu("s_mov_b32", sJ, 0)]
    o += [valu("v_mov_b32", v(M), "0xff800000")] + start + [label("L_smax")]
    o += fetch(SK, 0) + [wait(vm=0)] + kr + [wait(lgkm=0)] + qks + [nop(8)]
    o += [valu("v_max3_f32", v(M), v(M), v(S + 2 * i), v(S + 2 * i + 1)) for i in range(4)] + loop("L_smax")
    for sw in ("v_permlane32_swap_b32", "v_permlane16_swap_b32"):
        o += [valu("v_mov_b32", v(M2), v(M)), nop(1), I(f"{sw} v{M}, v{M2}", "valu", [f"v{M}", f"v{M2}"], [f"v{M}", f"v{M2}"]), nop(1),
              valu("v_max_f32", v(M), v(M), v(M2))]
    o += [valu("v_mov_b32", v(O + i), 0) for i in range(32)] + [valu("v_mov_b32", v(Lr + i), 0) for i in range(4)]
    o += start + [label("L_spv")]
    o += fetch(SK, 0) + fetch(SV, BLK) + [wait(vm=0)] + kr + [wait(lgkm=0)]
    o += [dsread("ds_read_b64_tr_b16", v(V + 4 * j + 2 * hb, 2), v(AV), BLK + hb * 512 + j * 32) for j in range(8) for hb in (0, 1)]
    o += qks + [nop(8)]
    o += [valu("v_sub_f32", v(S + i), v(S + i), v(M)) for i in range(8)] + [valu("v_mul_f32", v(S + i), sC, v(S + i)) for i in range(8)]
    o += [valu("v_exp_f32", v(S + i), v(S + i)) for i in range(8)] + [nop(0)]
    o += [valu("v_cvt_pk_bf16_f32", v(P + i), v(S + 2 * i), v(S + 2 * i + 1)) for i in range(4)] + [wait(lgkm=0), nop(1)]
    o += [mfma(v(Lr, 4), a(aONE, 4), v(P, 4), v(Lr, 4))] + [mfma(v(O + 4 * j, 4), v(V + 4 * j, 4), v(P, 4), v(O + 4 * j, 4)) for j in range(8)]
    o += loop("L_spv") + [nop(8), valu("v_rcp_f32", v(Lr), v(Lr)), nop(0)]
    o += [valu("v_mul_f32", v(O + i), v(O + i), v(Lr)) for i in range(32)]
    for j in range(8):
        o += [valu("v_cvt_pk_bf16_f32", v(O + 4 * j + i), v(O + 4 * j + 2 * i), v(O + 4 * j + 2 * i + 1)) for i in range(2)]
    o += [bstore(v(O + 4 * j, 2), v(vFr), SO, sO, 32 * j, op="buffer_store_dwordx2") for j in range(8)] + [wait(vm=0)]
    o += [label("L_snext"), salu("s_add_u32", sI, sI, 1), scmp("s_cmp_lt_u32", sI, 7), branch("s_cbranch_scc1", "L_ssub"),
          salu("s_add_u32", sRound, sRound, 1), scmp("s_cmp_lt_u32", sRound, 4), branch("s_cbranch_scc1", "L_sround")]
    return o

def build():
    VA = {0: 8, 1: 8, 2: 12, 3: 12}
    FA = step(ORDER7, True, plan_a(True), 2)
    PA = {p: step(ORDER7, False, plan_a(p != 3), VA[p], "L_exitA" if p == 3 else None) for p in range(4)}
    VB = {0: 11, 1: 7, 2: 9, 3: 13}; VFB = {0: 4, 1: 8, 2: 9, 3: 9}
    ordb = lambda p: ORDER7 if p == 0 else ORDER6
    FB = {p: step(ordb(p), True, plan_b(p), VFB[p], zero6=False) for p in range(4)}
    PB = {p: step(ordb(p), False, plan_b(p), VB[p], "L_exitB") for p in range(4)}
    if OPT.get("verbose"):
        print("A steps", [PA[p][3] for p in range(4)], file=sys.stderr)
        print("B steps", [PB[p][3] for p in range(4)], "barrier intervals", [PB[p][3] - PB[p][2] + PB[(p + 1) % 4][2] for p in range(4)], file=sys.stderr)
    both = lambda s_: s_[0] + s_[1]
    jump = lambda l: [branch("s_branch", l)]
    pro = prologue()
    sel = [scmp("s_cmp_eq_u32", sRole, 0), branch("s_cbranch_scc1", "L_headA"), branch("s_branch", "L_headB")]
    ex = lambda r: stamp() + [salu("s_sub_u32", sRound, sRound, 1), scmp("s_cmp_eq_u32", sRound, 0), branch("s_cbranch_scc1", f"L_tail{r}")]
    exA, exB, bA, bB, hA, hB, tA, tB = ex("A"), ex("B"), boundary("A"), boundary("B"), head0("A") + stamp(), head0("B") + stamp(), tail("A"), tail("B")
    fin = stamp() + ([wait(vm=0)] + stamp() if OPT["stamps"] else []) + dbg_end() + \
        [scmp("s_cmp_eq_u32", sFlag, 0), branch("s_cbranch_scc1", "L_end")]
    sl = slow()
    prog = pro + sel
    prog += [label("L_exitB")] + exB + bB + [label("L_headA")] + hA + both(FA)
    prog += [label("L_pa1")] + both(PA[1]) + both(PA[2]) + both(PA[3]) + both(PA[0]) + jump("L_pa1")
    prog += [label("L_exitA")] + exA + bA + [label("L_headB")] + hB + enter_b() + both(FB[0])
    prog += [label("L_pb1")] + both(PB[1]) + [label("L_pb2")] + both(PB[2]) + [label("L_pb3")] + both(PB[3]) + [label("L_pb0")] + both(PB[0]) + jump("L_pb1")
    for w in (1, 2, 3): prog += [label(f"L_fb{w}")] + both(FB[w]) + jump(f"L_pb{(w + 1) % 4}")
    prog += [label("L_tailB")] + tB + jump("L_fin") + [label("L_tailA")] + tA + [label("L_fin")] + fin + sl + [label("L_end"), raw("s_endpgm")]
    prog, far = expand(prog, "emit")
    k = next(i for i, x in enumerate(prog) if x.text == "L_exitB:")
    prog = prog[:k] + far + prog[k:]
    errs = check(sl, "slow")
    for w in range(4):
        ra = hA + both(FA) + flat(both(PA[j % 4]) for j in range(1, 15)) + PA[3][0] + exA
        rb = hB + enter_b() + both(FB[w]) + flat(both(PB[(w + j) % 4]) for j in range(1, 15)) + PB[(w + 15) % 4][0] + exB
        errs += check(pro + sel + expand(ra, "on") + expand(bA + rb + bB + ra + bA + rb + tB + fin, "off"), f"AB w{w}")
        errs += check(pro + sel + expand(rb, "on") + expand(bB + ra + bA + rb + bB + ra + tA + fin, "off"), f"BA w{w}")
    errs = list(dict.fromkeys(errs))
    for e in errs[:40]: print("CHECK:", e, file=sys.stderr)
    return prog, errs

HEADER = """; Attention forward, B=16 H=32 Sq=848 Sk=512 D=128, bf16 (written by the generator gen/gen.py).
; One workgroup per CU, four heads per pair of workgroups. Per head one workgroup takes rows 0..447 (round A: 7 x 16 rows
; exp2 runs without max subtraction; every row sum is range-checked and rows outside [2^-24, 2^40] are recomputed
; @launch grid=(256,1,1) block=(256,1,1) lds=%d
.amdgcn_target "amdgcn-amd-amdhsa--gfx950"
.text
.globl %s
.p2align 8
.type %s,@function
%s:
"""
FOOTER = """.section .rodata,"a"
.p2align 6
.amdhsa_kernel %s
  .amdhsa_next_free_vgpr 512
  .amdhsa_next_free_sgpr 96
  .amdhsa_accum_offset 256
  .amdhsa_group_segment_fixed_size 0
  .amdhsa_kernarg_size 48
  .amdhsa_user_sgpr_count 2
  .amdhsa_user_sgpr_kernarg_segment_ptr 1
  .amdhsa_system_sgpr_workgroup_id_x 1
  .amdhsa_float_denorm_mode_32 3
.end_amdhsa_kernel
"""

def emit(path):
    prog, errs = build()
    with open(path, "w") as f:
        f.write(HEADER % (LDS, KNAME, KNAME, KNAME))
        for x in prog:
            if x.text: f.write(("" if x.text.endswith(":") else "    ") + x.text + "\n")
        f.write(FOOTER % KNAME)
    return errs

if __name__ == "__main__":
    out = sys.argv[1]
    for kv in sys.argv[2:]:
        k, val = kv.split("=")
        OPT[k] = val.replace("+", " ")
    sys.exit(1 if emit(out) else 0)
```

```python
import sys, struct, math
from asmlib import *

KNAME = "standalone__gqa_softmax__near_ridge_kernel"
OPT = dict(kv="nt", q="nt", o="nt", stamps=False)

HEAD_Q = 848 * 256
HEAD_KV = 512 * 256
QBYTES = 512 * HEAD_Q
PITCH = 1056
BLK = 8 * PITCH
SLOT = 2 * BLK
STG0 = 3 * SLOT
STGW = 6 * 4096
LSUM = STG0 + 4 * STGW
LDS = LSUM + 1024
ORDER7 = [0, 1, 2, 6, 3, 4, 5]
ORDER6 = [0, 1, 2, 3, 4, 5]

vS, vT, vP = 192, 200, 208
vK, vV, vKb, vVb, vSt, vLin, vSw0, vSw1, vQa, vOw, vFr, vStb = range(212, 224)
vTMP = 224
vQx = 232
vOx = 235
vRc = 242
vMx, vMn, vQ6 = 250, 251, 255
aQ, aQ6n, aK, aV, aL, aONE, aO6 = 0, 112, 128, 160, 192, 220, 224
SK, SV, SQ, SO = "s[4:7]", "s[8:11]", "s[12:15]", "s[16:19]"
(sW, sC, sRd, sTop, sW2112, sKV, sQ, sO, sSM, sCnt, sRound, sCur0, sCur6, sNx0, sNx6,
 sE0, sE6, sF0, sF6, sHead, sFlag, sStg, sT0, sT1, sT2, sLo, sSpan, sPair, sRole, sI, sJ) = [f"s{i}" for i in range(28, 59)]

def v(i, n=1): return R("v", i, n)
def a(i, n=1): return R("a", i, n)
def Oreg(t, j): return a(aO6 + 4 * j, 4) if t == 6 else v(32 * t + 4 * j, 4)
def fbits(x): return struct.unpack("<I", struct.pack("<f", x))[0]
L_LO, L_HI = fbits(2.0 ** -24), fbits(2.0 ** 40)

def qk(t, i):
    hb, ks = i >> 2, i & 3
    d = v(vS + 4 * hb, 4)
    return mfma(d, a(aK + 4 * i, 4), a(aQ + 16 * t + 4 * ks, 4), 0 if ks == 0 else d)
def pv(t, j, first):
    d = Oreg(t, j)
    return mfma(d, a(aV + 4 * j, 4), v(vP, 4), 0 if first else d)
def summ(t, first):
    d = a(aL + 4 * t, 4)
    return mfma(d, a(aONE, 4), v(vP, 4), 0 if first else d)

def softmax_groups():
    m = lambda i: valu("v_mul_f32", v(vT + i), sC, v(vS + i))
    e = lambda i: valu("v_exp_f32", v(vT + i), v(vT + i))
    c = lambda i: valu("v_cvt_pk_bf16_f32", v(vP + i), v(vT + 2 * i), v(vT + 2 * i + 1))
    return [[m(0), m(1)], [e(0)], [e(1)], [m(2), m(3)], [e(2)], [m(4), m(5)], [e(3)], [m(6), m(7)],
            [e(4)], [e(5)], [c(0), c(1)], [e(6)], [e(7)], [c(2), c(3)]]
HEAD0, HEADL = 8, 7

def kread(i): return dsread("ds_read_b128", a(aK + 4 * i, 4), v(vK), (i >> 2) * 512 + (i & 3) * 64)
def vread(j): return [dsread("ds_read_b64_tr_b16", a(aV + 4 * j + 2 * hb, 2), v(vV), BLK + hb * 512 + j * 32) for hb in (0, 1)]

def gap_cost(ins):
    t = 4; prev = "mfma"
    for x in ins:
        k = x.kind
        if k in ("label", "need", "reset"): continue
        if k in VAL:
            if prev == "ds": t += 4
            t = max(t, 8) + (8 if k == "trans" else 4); prev = "valu"
        elif k == "dsr":
            if prev == "valu": t += 4
            t += 4; prev = "ds"
        else:
            if prev == "ds": t += 4
            t += {"dma": 12, "vst": 24, "barrier": 13, "branch": 8}.get(k, 4); prev = k
    if prev == "ds": t += 4
    return max(16, t)

class Stub(I):
    __slots__ = ("code", "skip", "name")
    n = 0
    def __init__(self, code, skip=()):
        Stub.n += 1
        self.name = f"L_stub{Stub.n}"; self.code = code; self.skip = list(skip)
        I.__init__(self, f"s_cbranch_vccnz {self.name}", "branch")
def expand(seq, mode):
    out = []; far = []
    for x in seq:
        if not isinstance(x, Stub): out.append(x); continue
        br = I(x.text, "branch")
        if mode == "emit":
            out += [br] + x.skip + [label(x.name + "r")]
            far += [label(x.name)] + x.code + [branch("s_branch", x.name + "r")]
        elif mode == "on": out += [br] + x.code + [I("s_branch", "branch")]
        else: out += [br] + x.skip
    return (out, far) if mode == "emit" else out

def step(order, first, plan, vmN, exit_label=None, zero6=True):
    n = len(order); NG = 17 * n
    at = lambda k, g: 17 * ((k - 1) % n) + g
    kvf, qf, of = OPT["kv"], OPT["q"], OPT["o"]
    job = "st0" in plan
    ops = {
        "bar": [wait(vm=vmN), need("kv", "step"), barrier()],
        "d0": [dma(v(vLin), SK, sKV, 0, kvf, "kv")], "d1": [dma(v(vLin), SK, sKV, 1024, kvf, "kv")],
        "d2": [dma(v(vLin), SV, sKV, 0, kvf, "kv")], "d3": [dma(v(vLin), SV, sKV, 1024, kvf, "kv")],
        "jr": [dsread("ds_read_b128", v(vTMP, 4), v(vSt), 0), dsread("ds_read_b128", v(vTMP + 4, 4), v(vSt), 1024)],
        "st0": [bstore(v(vTMP, 4), v(vSw0), SO, sO, 0, of)], "st1": [bstore(v(vTMP + 4, 4), v(vSw1), SO, sO, 1024, of)],
        "q0": [dma(v(vSw0), SQ, sQ, 0, qf, "q")], "q1": [dma(v(vSw1), SQ, sQ, 1024, qf, "q")],
        "upk": [valu("v_add_u32", v(vK), sRd, v(vKb))], "upv": [valu("v_add_u32", v(vV), sRd, v(vVb))],
        "ups": [valu("v_add_u32", v(vSt), 2048, v(vSt))],
        "last": [branch("s_cbranch_scc1", exit_label)] if exit_label else [],
    }
    for j in range(8): ops[f"v{j}"] = vread(j); ops[f"k{j}"] = [kread(j)]
    body = [[] for _ in range(NG)]; pre = [[] for _ in range(NG)]
    free = set(); extra = []; idx = {}
    for name, pos in plan.items():
        i = at(pos[0], pos[1]); idx[name] = i
        if len(pos) > 2: extra.append((i, ops[name]))
        else: free.add(i); body[i] += ops.get(name, [])
    for k in range(n):
        gaps = [at(k, g) for g in range(7, 17)] + [at(k + 1, g) for g in range(7)]
        nf = [sum(i in free for i in gaps[:10]), sum(i in free for i in gaps[10:])]
        assert sum(nf) == 3, (k, nf)
        if k == 0: assert 10 - nf[0] == HEAD0
        if k == n - 1: assert 10 - nf[0] == HEADL
        gs = softmax_groups()
        for i in gaps:
            if i not in free: body[i] += gs.pop(0)
    for i, ins in extra: body[i] += ins
    ms = [None] * NG
    for k in range(n):
        t, tp = order[k], order[k - 1]
        z = first and (tp != 6 or zero6)
        pvs = [pv(tp, j, z) for j in range(8)]
        seq = [qk(t, i) for i in range(8)] + ((pvs + [summ(tp, z)]) if k == 0 else ([summ(tp, z)] + pvs))
        for g in range(17): ms[at(k, g)] = seq[g]
    def can(i): return not pre[i] and (not body[i] or body[i][0].kind in VAL)
    def place(ins, lo, hi, latest=True):
        cand = [i for i in range(lo, hi) if can(i)]
        assert cand, (ins.text, lo, hi)
        i = cand[-1] if latest else cand[0]
        pre[i].append(ins); return i
    pend = [(-7, x) for j in range(4) for x in vread(j)]
    waits = []
    for i in range(NG):
        cons = [(ms[i], i)] + [(x, i) for x in body[i] if x.kind == "vst"]
        for y, _ in cons:
            hit = [p for p, (gi, x) in enumerate(pend) if x.wr & (y.rd | y.rdC)]
            if not hit: continue
            p = max(hit)
            cand = [h for h in range(max(pend[p][0] + 1, 0), i) if can(h)]
            assert cand, (y.text, i)
            h = cand[-1]
            while p + 1 < len(pend) and pend[p + 1][0] <= h - 6: p += 1
            pre[h].append(wait(lgkm=sum(1 for gi, x in pend[p + 1:] if gi < h)))
            pend = pend[p + 1:]
        pend += [(i, x) for x in body[i] if x.kind == "dsr"]
    m0 = {"d0": salu("s_mov_b32", "m0", sRd), "d1": salu("s_add_u32", "m0", sRd, 32),
          "d2": salu("s_add_u32", "m0", sRd, BLK), "d3": salu("s_add_u32", "m0", sRd, BLK + 32),
          "q0": salu("s_mov_b32", "m0", sSM), "q1": salu("s_mov_b32", "m0", sSM)}
    dm = sorted((idx[nm], nm) for nm in m0 if nm in idx)
    prev = (-1, None); m0pos = {}
    for i, nm in dm:
        if not (nm == "q1" and prev[1] == "q0"): m0pos[nm] = place(m0[nm], prev[0] + 1, i)
        prev = (i, nm)
    assert idx["bar"] < min(idx[d] for d in ("d0", "d1", "d2", "d3"))
    assert idx["bar"] > at(1, 14)
    lastd = max(idx[d] for d in ("d0", "d1", "d2", "d3"))
    up = min(idx["upk"], idx["upv"])
    cand = [i for i in range(max(m0pos[d] for d in ("d0", "d1", "d2", "d3")) + 1, up) if can(i)]
    pair = [(x, y) for x, y in zip(cand, cand[1:]) if all(not pre[z] or pre[z][0].kind == "wait" or pre[z][0].text.startswith("s_mov") for z in range(x, y))]
    x, y = pair[0]
    pre[x].append(salu("s_sub_u32", sRd, sRd, SLOT)); pre[y].append(salu("s_cselect_b32", sRd, sTop, sRd))
    lo = max(y, lastd) + 1
    hi = idx["last"]
    if exit_label: hi = place(salu("s_sub_u32", sCnt, sCnt, 1), lo, hi)
    place(salu("s_add_u32", sKV, sKV, 8192), lo, hi, False)
    if job:
        place(salu("s_add_u32", sO, sO, 2048), max(lo, idx["st1"] + 1), hi, False)
        place(salu("s_add_u32", sQ, sQ, 2048), max(lo, idx["q1"] + 1), hi, False)
        place(salu("s_add_u32", sSM, sSM, 2048), max(lo, idx["q1"] + 1), hi, False)
        assert idx["jr"] < idx["ups"] and idx["st0"] < idx["q0"] and idx["jr"] < idx["st0"]
    assert idx["upv"] > idx["v7"] and idx["upk"] < idx["k0"]
    if first:
        todo = [f"Q{t_}" for t_ in order[3:]] + ["KV2"] + ([] if n == 7 else ["Q6"])
        hist = list(PRO)
        sites = []
        for k in range(1, n - 1):
            i = at(k, 12)
            while not can(i) or x < i <= y: i -= 1
            sites.append((i, order[k + 1]))
        i = NG - 1
        while not can(i): i -= 1
        sites += [(i, None), (idx["bar"], "bar")]
        done = 0
        for i, t_ in sorted(sites, key=lambda z: z[0]):
            hist += ["x" for h in range(done, i) for z in body[h] if z.kind in ("dma", "vst")]; done = i
            after = lambda nm: sum(1 if z == "x" else 4 for z in hist[hist.index(nm) + 1:])
            if t_ == "bar":
                body[i][0] = Stub([wait(vm=after("KV1"))], [body[i][0]]); continue
            code = []
            while todo and (t_ is None or f"Q{t_}" not in hist or sum(z != "x" for z in hist[hist.index(f"Q{t_}") + 1:]) < int(OPT.get("ahead", 2))):
                hist.append(todo[0]); code += pro_load(todo.pop(0))
            last = [z for z in hist if z != "x"][-1]
            if t_ is None and OPT.get("defer", "1") == "1":
                code += pro_load("KV3") + [salu("s_mov_b32", sKV, 4 * 8192)]; hist += ["x"] * 4
                if job:
                    code += [salu("s_mov_b32", "m0", sStg), salu("s_add_u32", sQ, sNx0, 2048),
                             dma(v(vSw0), SQ, sNx0, 0, qf, "qq"), dma(v(vSw1), SQ, sNx0, 1024, qf, "qq")] + ops["st0"] + ops["st1"]; hist += ["x"] * 4
                else: code += [salu("s_mov_b32", sQ, sNx0)]
            if code: code = [salu("s_mov_b32", sT2, "m0")] + code + [salu("s_mov_b32", "m0", sT2)]
            code.append(wait(vm=after(last if t_ is None else f"Q{t_}")))
            if t_ not in (None, 6): code += qreads(t_, tag="q0") + [wait(lgkm=0)]
            pre[i].append(Stub(code))
    out = []; t = 0; tb = None
    drop = OPT.get("drop", "").split()
    for i in range(NG):
        if i % 17 == 0:
            k = (i // 17 + 1) % n
            out.append(comment(f"slot {k}: QK subtile {order[k]}, PV subtile {order[k-1]}"))
        if i == 17 * (n - 1): cut = len(out) - 1
        if i == idx["bar"]: tb = t
        g = [x for x in pre[i] + body[i] if x.kind not in drop]
        out.append(ms[i]); out += g; t += gap_cost(g)
    return out[:cut], out[cut:], tb, t

PRO = ["KV0", "Q0", "Q1", "KV1", "Q2"]
def pro_load(x):
    n_ = int(x[-1]); o = []
    if x[0] == "K":
        for srd, off in ((SK, 0), (SV, BLK)):
            sl = (2 - n_) % 3 * SLOT + off
            tag = "kv" if n_ < 3 else "kv3"
            o += [salu("s_add_u32", "m0", sW2112, sl), salu("s_mov_b32", sT0, n_ * 8192), dma(v(vLin), srd, sT0, 0, OPT["kv"], tag),
                  salu("s_add_u32", "m0", sW2112, sl + 32), nop(0), dma(v(vLin), srd, sT0, 1024, OPT["kv"], tag)]
        return o
    if n_ == 6: return q6loads(sCur6)
    return [salu("s_add_u32", "m0", sStg, 4096 * n_), salu("s_add_u32", sT0, sCur0, 4096 * n_)] + \
           [dma(v(vSw1 if n & 1 else vSw0), SQ, sT0, 1024 * n, OPT["q"], "q0") for n in range(4)]

def vk_sites(n, v67=(7, 7)):
    L = n - 1
    return {"v0": (0, 10), "v1": (0, 10), "v2": (0, 14), "v3": (0, 14), "v4": (1, 1), "v5": (1, 1), "v6": (1, v67[0]), "v7": (1, v67[1]),
            "k0": (L, 1), "k1": (L, 1), "k2": (L, 5), "k3": (L, 5), "k4": (L, 8), "k5": (L, 8), "k6": (L, 11), "k7": (L, 11), "last": (L, 16)}

def plan_a(job):
    p = vk_sites(7)
    p.update({"bar": (2, 0), "d0": (2, 4), "d1": (2, 9), "d2": (2, 14), "d3": (3, 2), "upk": (3, 13), "upv": (3, 13)})
    if job: p.update({"jr": (3, 9), "st0": (4, 3), "st1": (4, 9), "q0": (4, 14), "q1": (5, 2), "ups": (5, 10)})
    else: p.update({"e0": (3, 9), "e1": (4, 3), "e2": (4, 9), "e3": (4, 14), "e4": (5, 2), "e5": (5, 10)})
    return p

def plan_b(p_):
    if p_ == 0:
        p = vk_sites(7, (7, 9))
        p.update({"e0": (2, 3), "bar": (2, 10), "d0": (2, 14), "d1": (3, 2), "d2": (3, 9), "d3": (3, 14), "e1": (4, 3),
                  "upk": (4, 9), "upv": (4, 9), "e2": (4, 14), "e3": (5, 2), "e4": (5, 10)})
        return p
    p = vk_sites(6)
    p["jr"] = (1, 7)
    if p_ == 1: p.update({"bar": (1, 15), "d0": (2, 3), "d1": (2, 8), "d2": (2, 13), "d3": (3, 1), "st0": (3, 8), "st1": (3, 13), "q0": (4, 1), "q1": (4, 9)})
    if p_ == 2: p.update({"st0": (1, 15), "bar": (2, 1), "d0": (2, 8), "d1": (2, 13), "d2": (3, 1), "d3": (3, 8), "st1": (3, 13), "q0": (4, 1), "q1": (4, 9)})
    if p_ == 3: p.update({"st0": (1, 15), "bar": (2, 5), "d0": (2, 9), "d1": (2, 13), "d2": (3, 1), "d3": (3, 8), "st1": (3, 13), "q0": (4, 1), "q1": (4, 9)})
    p.update({"upk": (4, 12, "x"), "upv": (4, 14, "x"), "ups": (4, 16, "x")})
    return p

def stamp():
    if not OPT["stamps"]: return []
    return [raw("s_memtime s[60:61]", "smem", (), regs("s[60:61]")), raw("s_memrealtime s[62:63]", "smem", (), regs("s[62:63]")),
            wait(lgkm=0), valu("v_mov_b32", "v252", "s60"), valu("v_mov_b32", "v253", "s62"), valu("v_mov_b32", "v254", 0),
            raw("s_mov_b64 exec, 1", "salu"),
            bstore("v[252:253]", "v254", "s[64:67]", "s68", op="buffer_store_dwordx2"),
            raw("s_mov_b64 exec, -1", "salu"), salu("s_add_u32", "s68", "s68", 8), nop(3)]
def stamp_init():
    if not OPT["stamps"]: return []
    return [raw("s_load_dwordx2 s[64:65], s[0:1], 40", "smem", (), regs("s[64:65]")), wait(lgkm=0),
            salu("s_mov_b32", "s66", 1 << 20), salu("s_mov_b32", "s67", "0x20000"),
            salu("s_lshl_b32", "s68", "s2", 2), salu("s_add_u32", "s68", "s68", sW), salu("s_lshl_b32", "s68", "s68", 8)] + stamp()
def dbg_begin():
    if not OPT.get("dbg"): return []
    return [raw("s_memtime s[70:71]", "smem", (), regs("s[70:71]")), raw("s_memrealtime s[72:73]", "smem", (), regs("s[72:73]")),
            raw("s_load_dwordx2 s[76:77], s[0:1], 32", "smem", (), regs("s[76:77]")), wait(lgkm=0),
            salu("s_mov_b32", "s78", 64), salu("s_mov_b32", "s79", "0x20000")]
def dbg_end():
    if not OPT.get("dbg"): return []
    return [wait(vm=0), raw("s_memtime s[60:61]", "smem", (), regs("s[60:61]")), raw("s_memrealtime s[62:63]", "smem", (), regs("s[62:63]")),
            wait(lgkm=0), salu("s_sub_u32", "s60", "s60", "s70"), salu("s_sub_u32", "s62", "s62", "s72"),
            salu("s_lshl_b32", "s61", sW, 8), salu("s_add_u32", "s61", "s61", "s2"), salu("s_lshl_b32", "s61", "s61", 3),
            valu("v_mov_b32", "v252", "s60"), valu("v_mov_b32", "v253", "s62"), valu("v_mov_b32", "v254", "s61"),
            raw("s_mov_b64 exec, 1", "salu"),
            bstore("v[252:253]", "v254", "s[76:79]", 0, op="buffer_store_dwordx2"), raw("s_mov_b64 exec, -1", "salu")]

def flat(gs): return [x for g in gs for x in g]
def spaced(seq):
    out = []
    for x in seq:
        if out and out[-1].kind == "trans" and x.kind == "valu" and out[-1].wr & x.rd: out.append(nop(0))
        out.append(x)
    return out
def weave(ms, fill, pres=()):
    out = []; fill = list(fill); pres = list(pres)
    for m_ in ms:
        out.append(m_)
        g = fill.pop(0) if fill else []
        if pres and (not g or g[0].kind in VAL): out.append(pres.pop(0))
        out += g
    return out + flat(fill) + pres
def pairs(seq): return [seq[i:i + 2] for i in range(0, len(seq), 2)]

def qaddr(ks): return v(vQa) if ks == 0 else v(vQx + ks - 1)
def oaddr(j): return v(vOw) if j == 0 else v(vOx + j - 1)
def qreads(t, slot=None, tag="q"):
    slot = t if slot is None else slot
    return ([need(tag, 4 * t + 4)] if t < 6 else []) + \
        [dsread("ds_read_b128", a(aQ + 16 * t + 4 * ks, 4), qaddr(ks), 4096 * slot) for ks in range(4)]
def q6bounce(slot): return [dswrite("ds_write_b128", v(vStb), a(aQ6n + 4 * n, 4), 4096 * slot + 1024 * n) for n in range(4)]
def q6loads(soff): return [bload(a(aQ + 96 + 4 * ks, 4), v(vQ6), SQ, soff, 64 * ks, OPT["q"]) for ks in range(4)]
def readback(slot, dst): return [dsread("ds_read_b128", v(dst + 4 * n, 4), v(vStb), 4096 * slot + 1024 * n) for n in range(4)]
def stores(src, soff): return [bstore(v(src + 4 * n, 4), v(vSw1 if n & 1 else vSw0), SO, soff, 1024 * n, OPT["o"]) for n in range(4)]

def flag(mask):
    return [salu("s_lshl_b32", sFlag, sFlag, 1), scmp("s_cmp_lg_u64", mask, 0), salu("s_addc_u32", sFlag, sFlag, 0)]
def l_own():
    r = lambda t: v(vRc + t)
    g = pairs([valu("v_accvgpr_read_b32", r(t), a(aL + 4 * t)) for t in range(6)])
    g += [[valu("v_max3_u32", v(vMx), r(0), r(1), r(2)), valu("v_min3_u32", v(vMn), r(0), r(1), r(2))],
          [valu("v_max3_u32", v(vMx), v(vMx), r(3), r(4)), valu("v_min3_u32", v(vMn), v(vMn), r(3), r(4))],
          [valu("v_max_u32", v(vMx), v(vMx), r(5)), valu("v_min_u32", v(vMn), v(vMn), r(5))],
          [valu("v_subrev_u32", v(vMx), sLo, v(vMx)), valu("v_subrev_u32", v(vMn), sLo, v(vMn))],
          [valu("v_max_u32", v(vMx), v(vMx), v(vMn)), valu("v_cmp_lt_u32", "vcc", sSpan, v(vMx))]]
    g += [[valu("v_rcp_f32", r(t), r(t))] for t in range(6)]
    return g, flag("vcc")
def l_six():
    r = v(vRc + 6)
    return [valu("v_subrev_u32", v(vMx), sLo, r), valu("v_cmp_lt_u32", "vcc", sSpan, v(vMx)), valu("v_rcp_f32", r, r), nop(1)] + flag("vcc")

def scale_pack(t, base, nblk):
    rp = v(vRc + (t & ~1), 2)
    mods = "op_sel_hi:[1,0]" if t % 2 == 0 else "op_sel:[0,1] op_sel_hi:[1,1]"
    o = [valu("v_pk_mul_f32", v(base + 2 * i, 2), v(base + 2 * i, 2), rp, mods=mods) for i in range(2 * nblk)]
    for b in range(nblk):
        o += [valu("v_cvt_pk_bf16_f32", v(base + 4 * b + i), v(base + 4 * b + 2 * i), v(base + 4 * b + 2 * i + 1)) for i in range(2)]
    return o
def epi(t, slot, tmp=None, side=()):
    o = []; side = list(side)
    for j0 in range(0, 8, 2):
        if t == 6:
            base = tmp + 4 * j0
            o += [valu("v_accvgpr_read_b32", v(base + i), a(aO6 + 4 * j0 + i)) for i in range(8)]
        else:
            base = 32 * t + 4 * j0
        o += scale_pack(t, base, 2)
        o += [dswrite("ds_write_b64", oaddr(j0 + b), v(base + 4 * b, 2), 4096 * slot) for b in range(2)]
        if side: o += side.pop(0)
    return o

def red_put():
    w = [dswrite("ds_write_b128", v(vStb), a(aO6 + 4 * j, 4), 1024 * j) for j in range(8)]
    pre_ = [valu("v_lshrrev_b32", v(vMn), 2, v(vLin)), valu("v_and_b32", v(vMx), 255, v(vMn)), valu("v_lshrrev_b32", v(vMn), 9, v(vMn)),
            valu("v_lshl_add_u32", v(vMn), v(vMn), 8, v(vMx)), valu("v_add_u32", v(vMn), LSUM, v(vMn)), valu("v_add_u32", v(vMx), LSUM, v(vMx)),
            dswrite("ds_write_b32", v(vMn), a(aL + 24), 0)]
    return pre_, pairs(w)
def red_get(tmp):
    o = [valu("v_add_u32", v(vMn), STG0, v(vLin)), valu("v_add_u32", v(vTMP + 4), STG0 + 2 * STGW, v(vLin))]
    for w in range(4):
        ad = v(vMn) if w < 2 else v(vTMP + 4)
        o += [dsread("ds_read_b128", v(tmp + 8 * w + 4 * b, 4), ad, (w & 1) * STGW + 1024 * b) for b in range(2)]
    o += [dsread("ds_read_b32", v(vTMP + w), v(vMx), 256 * w) for w in range(4)]
    return o
def red_fin(tmp, soff):
    o = [valu("v_add_f32", v(vTMP), v(vTMP), v(vTMP + 1)), valu("v_add_f32", v(vTMP + 2), v(vTMP + 2), v(vTMP + 3)),
         valu("v_add_f32", v(vRc + 6), v(vTMP), v(vTMP + 2))]
    o += l_six()
    for x, y in ((0, 1), (2, 3), (0, 2)):
        o += [valu("v_pk_add_f32", v(tmp + 8 * x + 2 * i, 2), v(tmp + 8 * x + 2 * i, 2), v(tmp + 8 * y + 2 * i, 2)) for i in range(4)]
    o += scale_pack(6, tmp, 2)
    o += [salu("s_lshl_b32", sT2, sW, 6), salu("s_add_u32", sT2, sT2, soff)]
    o += [bstore(v(tmp + 4 * b, 2), v(vFr), SO, sT2, 32 * b, OPT["o"], op="buffer_store_dwordx2") for b in range(2)]
    return o

def next_bases():
    return [salu("s_add_u32", sHead, sHead, HEAD_Q),
            salu("s_add_u32", sNx0, sHead, sE0), salu("s_add_u32", sNx6, sHead, sE6),
            salu("s_mov_b32", sT0, sE0), salu("s_mov_b32", sE0, sF0), salu("s_mov_b32", sF0, sT0),
            salu("s_mov_b32", sT0, sE6), salu("s_mov_b32", sE6, sF6), salu("s_mov_b32", sF6, sT0)]

def head0(role):
    g = softmax_groups()[:HEAD0]
    if role == "A": return spaced(flat(g)) + [salu("s_mov_b32", sCnt, 3), wait(lgkm=0)]
    z = v(vTMP + 4, 4)
    zs = [mfma(a(aO6 + 4 * j, 4), z, z, 0) for j in range(8)] + [mfma(a(aL + 24, 4), z, z, 0)]
    return [valu("v_mov_b32", v(vTMP + 4 + i), 0) for i in range(4)] + g[0] + weave(zs, g[1:], [salu("s_mov_b32", sCnt, 14)]) + [wait(lgkm=0)]
def enter_b():
    o = []
    for w in (1, 2, 3): o += [scmp("s_cmp_eq_u32", sW, w), branch("s_cbranch_scc1", f"L_fb{w}")]
    return o

def boundary(prev):
    ql = q6loads(sNx6)
    o = [wait(vm=8)] + [ql[0]] + qreads(0) + spaced(flat(softmax_groups()[HEADL:]))
    sal = [salu("s_mov_b32", "s18", QBYTES), salu("s_mov_b32", sO, sCur0), salu("s_mov_b32", sT1, sCur6),
           salu("s_mov_b32", sCur0, sNx0), salu("s_mov_b32", sCur6, sNx6)] + next_bases() + \
          [salu("s_mov_b32", sQ, sNx0), salu("s_mov_b32", sSM, sStg)]
    q1, q2 = qreads(1), qreads(2)
    o += [nop(1)] + weave([summ(5, False)] + [pv(5, j, False) for j in range(8)],
                          [q1[:3]] + [vread(j) for j in range(4)] + [q1[3:], q2[:3], q2[3:], [ql[1]]])
    o.append(wait(lgkm=14))
    ql = q6loads(sCur6)
    lg, fl = l_own()
    o += weave([qk(0, i) for i in range(8)], lg[:8], sal[:8])
    for g, s_ in zip(lg[8:], sal[8:14]): o += g + [s_]
    o += sal[14:] + fl + [valu("v_mov_b32", v(vSt), v(vStb)), ql[2]]
    dis = [scmp("s_cmp_eq_u32", sRound, 1), salu("s_cselect_b32", "s14", 0, "s14")]
    if prev == "A":
        o += [valu("v_accvgpr_read_b32", v(vRc + 6), a(aL + 24))] + l_six()
        o += epi(1, 1) + [ql[3]] + dis
        o += epi(6, 0, tmp=32) + readback(0, 32) + qreads(3)
        o += epi(2, 2)
        o += [wait(lgkm=8)] + epi(0, 0, side=[[x] for x in stores(32, sT1)]) + qreads(4)
        o += epi(3, 3) + [wait(vm=8)] + qreads(5) + epi(4, 4) + epi(5, 5)
    else:
        p0, pw = red_put()
        o += p0 + epi(2, 2, side=pw) + [ql[3]] + dis + qreads(3) + [wait(lgkm=4), barrier()] + red_get(64)
        o += epi(3, 3) + qreads(4) + [wait(lgkm=12), barrier()]
        o += red_fin(64, sT1)
        o += epi(0, 0) + epi(1, 1) + [wait(vm=6)] + qreads(5) + epi(4, 4) + epi(5, 5)
    o += [reset("q"), salu("s_mov_b64", "vcc", 0)]
    return o

def tail(prev):
    keep = OPT["o"]; OPT["o"] = OPT.get("ot", keep)
    o = tail_(prev); OPT["o"] = keep
    return o
def tail_(prev):
    o = spaced(flat(softmax_groups()[HEADL:])) + [salu("s_mov_b32", "s18", QBYTES), wait(vm=0)]
    lg, fl = l_own()
    o += [summ(5, False)] + [pv(5, j, False) for j in range(8)] + spaced(flat(lg)) + fl
    def st(t): return [[salu("s_add_u32", sT1, sCur0, 4096 * t)] + stores(32 * t, sT1)[:1]] + [[x] for x in stores(32 * t, sT1)[1:]]
    if prev == "A":
        o += [valu("v_accvgpr_read_b32", v(vRc + 6), a(aL + 24))] + l_six()
        o += epi(1, 1) + readback(1, 32) + epi(0, 0) + readback(0, 0)
        seq = [1, 0, 2, 3, 4, 5]
        for i in range(2, 6): o += [wait(lgkm=12)] + epi(seq[i], seq[i], side=st(seq[i - 2])) + readback(seq[i], 32 * seq[i])
        o += [wait(lgkm=12)] + epi(6, 0, tmp=32, side=st(4)) + readback(0, 32)
        o += [wait(lgkm=12)] + flat(st(5)) + [wait(lgkm=0)] + stores(32, sCur6)
    else:
        p0, pw = red_put()
        o += p0 + epi(2, 2, side=pw) + readback(2, 64) + [wait(lgkm=4), barrier()]
        o += epi(3, 3) + readback(3, 96) + [wait(lgkm=12)] + epi(4, 4, side=st(2)) + red_get(64) + [wait(lgkm=12)]
        o += flat(st(3)) + readback(4, 128) + [wait(lgkm=4), barrier()]
        o += red_fin(64, sCur6)
        o += [wait(lgkm=0)] + epi(5, 5, side=st(4)) + readback(5, 160) + epi(0, 0) + readback(0, 0)
        o += [wait(lgkm=12)] + epi(1, 1, side=st(5)) + readback(1, 32) + [wait(lgkm=12)] + flat(st(0)) + [wait(lgkm=0)] + flat(st(1))
    return o

def role_bases():
    return [salu("s_mul_i32", sE0, sW, 7 * 4096), salu("s_add_u32", sE6, sE0, 6 * 4096),
            salu("s_mul_i32", sF0, sW, 6 * 4096), salu("s_add_u32", sF0, sF0, 448 * 256), salu("s_mov_b32", sF6, 832 * 256),
            scmp("s_cmp_eq_u32", sRole, 0),
            salu("s_cselect_b32", sT0, sE0, sF0), salu("s_cselect_b32", sF0, sF0, sE0), salu("s_mov_b32", sE0, sT0),
            salu("s_cselect_b32", sT0, sE6, sF6), salu("s_cselect_b32", sF6, sF6, sE6), salu("s_mov_b32", sE6, sT0),
            salu("s_mul_i32", sHead, sPair, 4 * HEAD_Q), salu("s_sub_u32", sHead, sHead, HEAD_Q)]

def prologue():
    c = math.log2(math.e) / math.sqrt(128.0)
    L, G, Rw, X, Y, Z = (vTMP + i for i in range(6))
    o = [scmp("s_cmp_ge_u32", "s2", 256), branch("s_cbranch_scc1", "L_end")] + dbg_begin()
    o += [raw("s_load_dwordx4 s[20:23], s[0:1], 0", "smem", (), regs("s[20:23]")),
          raw("s_load_dwordx4 s[24:27], s[0:1], 16", "smem", (), regs("s[24:27]")),
          valu("v_lshrrev_b32", v(X), 6, "v0"), valu("v_and_b32", v(L), 63, "v0"),
          valu("v_readfirstlane_b32", sW, v(X)),
          valu("v_lshrrev_b32", v(G), 4, v(L)), valu("v_and_b32", v(Rw), 15, v(L)),
          salu("s_lshr_b32", sT0, "s2", 4), salu("s_lshl_b32", sT0, sT0, 3), salu("s_and_b32", sT1, "s2", 7),
          salu("s_add_u32", sPair, sT0, sT1), salu("s_bfe_u32", sRole, "s2", "0x10003")]
    if OPT.get("adj"): o += [salu("s_lshr_b32", sPair, "s2", 1), salu("s_and_b32", sRole, "s2", 1)]
    o += [
          salu("s_mul_i32", sW2112, sW, 2 * PITCH), salu("s_add_u32", sTop, sW2112, 2 * SLOT),
          salu("s_mul_i32", sStg, sW, STGW), salu("s_add_u32", sStg, sStg, STG0)]
    o += role_bases()
    o += next_bases() + [salu("s_mov_b32", sCur0, sNx0), salu("s_mov_b32", sCur6, sNx6)] + next_bases()
    o += [comment("vLin = lane*16 + wave*2048, vStb = lane*16 + staging base"),
          valu("v_lshlrev_b32", v(Y), 4, v(L)), valu("v_add_u32", v(vStb), sStg, v(Y)),
          valu("v_lshl_add_u32", v(vLin), v(X), 11, v(Y)),
          comment("vSw0/1 = g*256 + ((lane&15) ^ s(rho))*16, rho = g (+4), s(rho) = rho | (rho&1)<<3"),
          valu("v_and_b32", v(Y), 1, v(G)), valu("v_lshl_add_u32", v(Y), v(Y), 3, v(G)),
          valu("v_xor_b32", v(Y), v(Y), v(Rw)), valu("v_lshlrev_b32", v(Y), 4, v(Y)),
          valu("v_lshl_add_u32", v(vSw0), v(G), 8, v(Y)), valu("v_xor_b32", v(vSw1), 64, v(vSw0)),
          valu("v_lshlrev_b32", v(Y), 4, v(G)), valu("v_lshl_add_u32", v(vQ6), v(Rw), 8, v(Y))]
    o += [wait(lgkm=0),
          salu("s_lshl_b32", sT0, sPair, 19),
          salu("s_add_u32", "s4", "s22", sT0), salu("s_addc_u32", "s5", "s23", 0), salu("s_mov_b32", "s6", 4 * HEAD_KV), salu("s_mov_b32", "s7", "0x20000"),
          salu("s_add_u32", "s8", "s24", sT0), salu("s_addc_u32", "s9", "s25", 0), salu("s_mov_b32", "s10", 4 * HEAD_KV), salu("s_mov_b32", "s11", "0x20000"),
          salu("s_mov_b32", "s12", "s20"), salu("s_mov_b32", "s13", "s21"), salu("s_mov_b32", "s14", QBYTES), salu("s_mov_b32", "s15", "0x20000"),
          salu("s_mov_b32", "s16", "s26"), salu("s_mov_b32", "s17", "s27"), salu("s_mov_b32", "s18", 0), salu("s_mov_b32", "s19", "0x20000")]
    o += stamp_init()
    o += pro_load(PRO[0])
    for i in range(int(OPT.get("stag", 0))):
        o += [scmp("s_cmp_eq_u32", sRole, 0), branch("s_cbranch_scc1", f"L_go{i}"), I("s_waitcnt vmcnt(0)", "other")]
        if i + 1 < int(OPT["stag"]): o += [I(x.text, "other") for x in pro_load(f"KV{i + 1}")]
        o += [label(f"L_go{i}")]
    for x in PRO[1:3]: o += pro_load(x)
    o += [comment("staging: Q fragment row*256 + (g ^ s)*16, O write row*256 + ((g>>1) ^ s)*16 + (g&1)*8; vFr = row*256 + g*8"),
          valu("v_and_b32", v(Y), 1, v(Rw)), valu("v_and_b32", v(Z), 7, v(Rw)), valu("v_lshl_add_u32", v(Y), v(Y), 3, v(Z)),
          valu("v_lshlrev_b32", v(Z), 8, v(Rw)), valu("v_lshl_add_u32", v(vFr), v(G), 3, v(Z)), valu("v_add_u32", v(Z), sStg, v(Z)),
          valu("v_xor_b32", v(X), v(Y), v(G)), valu("v_lshl_add_u32", v(vQa), v(X), 4, v(Z)),
          valu("v_lshrrev_b32", v(X), 1, v(G)), valu("v_xor_b32", v(X), v(Y), v(X)), valu("v_lshl_add_u32", v(vOw), v(X), 4, v(Z)),
          valu("v_and_b32", v(X), 1, v(G)), valu("v_lshl_add_u32", v(vOw), v(X), 3, v(vOw)),
          comment("ring: K piece row&7, line row>>3, chunk g; V piece (lane>>2)&7, line lane>>5, 8-byte chunk lane&3"),
          salu("s_mov_b32", sT0, PITCH),
          valu("v_and_b32", v(X), 7, v(Rw)), valu("v_mul_lo_u32", v(X), v(X), sT0),
          valu("v_lshrrev_b32", v(Y), 3, v(Rw)), valu("v_lshl_add_u32", v(X), v(Y), 8, v(X)),
          valu("v_lshl_add_u32", v(X), v(G), 4, v(X)), valu("v_subrev_u32", v(vKb), sW2112, v(X)),
          valu("v_bfe_u32", v(X), v(L), 2, 3), valu("v_mul_lo_u32", v(X), v(X), sT0),
          valu("v_lshrrev_b32", v(Y), 5, v(L)), valu("v_lshl_add_u32", v(X), v(Y), 8, v(X)),
          valu("v_and_b32", v(Y), 3, v(L)), valu("v_lshl_add_u32", v(X), v(Y), 3, v(X)),
          valu("v_subrev_u32", v(vVb), sW2112, v(X)),
          valu("v_add_u32", v(vK), sTop, v(vKb)), valu("v_add_u32", v(vV), sTop, v(vVb)),
          comment("row-sum operand: ones in rows 0,4,8,12"),
          valu("v_mov_b32", v(X), "0x3f803f80"), valu("v_cmp_eq_u32", "vcc", 0, v(Y)), nop(1),
          valu("v_cndmask_b32", v(X), 0, v(X), "vcc")]
    o += [valu("v_accvgpr_write_b32", a(aONE + i), v(X)) for i in range(4)]
    o += [salu("s_mov_b32", sC, hex(fbits(c))), salu("s_mov_b32", sRd, sTop), salu("s_mov_b32", sKV, 3 * 8192),
          salu("s_mov_b32", sQ, sNx0), salu("s_mov_b32", sO, 0), salu("s_mov_b32", sSM, sStg),
          salu("s_mov_b32", sRound, 4), salu("s_mov_b32", sFlag, 0),
          salu("s_mov_b32", sLo, hex(L_LO)), salu("s_mov_b32", sSpan, hex(L_HI - L_LO)),
          valu("v_mov_b32", v(vSt), v(vStb))]
    o += [valu("v_xor_b32", v(vQx + ks - 1), 64 * ks, v(vQa)) for ks in (1, 2, 3)]
    o += [valu("v_xor_b32", v(vOx + j - 1), 32 * j, v(vOw)) for j in range(1, 8)]
    if OPT.get("defer", "1") == "1": o += [salu("s_mov_b32", sKV, "0x40000000"), salu("s_mov_b32", sQ, "0x40000000")]
    o += pro_load(PRO[3])
    o += [salu("s_mov_b64", "vcc", -1), wait(vm=8), need("kv", 4), barrier()]
    o += [kread(i) for i in range(8)] + qreads(0, tag="q0") + pro_load(PRO[4]) + [wait(lgkm=0)]
    o += weave([qk(0, i) for i in range(8)], [vread(j) for j in range(4)])
    o += [wait(vm=8)] + qreads(1, tag="q0")
    return o

def slow():
    Q, S, P, O, K, V, Lr = 0, 16, 24, 32, 64, 96, 128
    M, M2, AK, AV, AL, AQ = 132, 133, 134, 135, 136, 137
    o = [label("L_slow"), wait(vm=0, lgkm=0), salu("s_mov_b32", "s14", QBYTES)] + role_bases()
    o += [salu("s_add_u32", sT0, sStg, sW2112), valu("v_add_u32", v(AK), sT0, v(vKb)), valu("v_add_u32", v(AV), sT0, v(vVb)),
          valu("v_and_b32", v(AL), 1023, v(vLin)), valu("v_mov_b32", v(AQ), v(vQ6)),
          salu("s_mov_b32", sRound, 0),
          label("L_sround")] + next_bases() + [salu("s_mov_b32", sI, 0),
          label("L_ssub"),
          scmp("s_cmp_eq_u32", sI, 6), salu("s_cselect_b32", sT1, 6, 7), salu("s_lshl_b32", sT0, sRound, 1), salu("s_sub_u32", sT1, sT1, sT0),
          scmp("s_bitcmp1_b32", sFlag, sT1), branch("s_cbranch_scc0", "L_snext"),
          salu("s_lshl_b32", sT0, sI, 12), salu("s_add_u32", sO, sNx0, sT0), scmp("s_cmp_eq_u32", sI, 6), salu("s_cselect_b32", sO, sNx6, sO)]
    o += [bload(v(Q + 4 * ks, 4), v(AQ), SQ, sO, 64 * ks) for ks in range(4)]
    def fetch(srd, off):
        r = []
        for n in range(8):
            r += [salu("s_add_u32", "m0", sStg, off + PITCH * n), salu("s_add_u32", sT0, sKV, 1024 * n), dma(v(AL), srd, sT0)]
        return r
    kr = [dsread("ds_read_b128", v(K + 4 * i, 4), v(AK), (i >> 2) * 512 + (i & 3) * 64) for i in range(8)]
    qks = [mfma(v(S + 4 * (i >> 2), 4), v(K + 4 * i, 4), v(Q + 4 * (i & 3), 4), 0 if i & 3 == 0 else v(S + 4 * (i >> 2), 4)) for i in range(8)]
    loop = lambda lab: [salu("s_add_u32", sKV, sKV, 8192), salu("s_add_u32", sJ, sJ, 1), scmp("s_cmp_lt_u32", sJ, 16), branch("s_cbranch_scc1", lab)]
    start = [salu("s_lshl_b32", sKV, sRound, 17), salu("s_mov_b32", sJ, 0)]
    o += [valu("v_mov_b32", v(M), "0xff800000")] + start + [label("L_smax")]
    o += fetch(SK, 0) + [wait(vm=0)] + kr + [wait(lgkm=0)] + qks + [nop(8)]
    o += [valu("v_max3_f32", v(M), v(M), v(S + 2 * i), v(S + 2 * i + 1)) for i in range(4)] + loop("L_smax")
    for sw in ("v_permlane32_swap_b32", "v_permlane16_swap_b32"):
        o += [valu("v_mov_b32", v(M2), v(M)), nop(1), I(f"{sw} v{M}, v{M2}", "valu", [f"v{M}", f"v{M2}"], [f"v{M}", f"v{M2}"]), nop(1),
              valu("v_max_f32", v(M), v(M), v(M2))]
    o += [valu("v_mov_b32", v(O + i), 0) for i in range(32)] + [valu("v_mov_b32", v(Lr + i), 0) for i in range(4)]
    o += start + [label("L_spv")]
    o += fetch(SK, 0) + fetch(SV, BLK) + [wait(vm=0)] + kr + [wait(lgkm=0)]
    o += [dsread("ds_read_b64_tr_b16", v(V + 4 * j + 2 * hb, 2), v(AV), BLK + hb * 512 + j * 32) for j in range(8) for hb in (0, 1)]
    o += qks + [nop(8)]
    o += [valu("v_sub_f32", v(S + i), v(S + i), v(M)) for i in range(8)] + [valu("v_mul_f32", v(S + i), sC, v(S + i)) for i in range(8)]
    o += [valu("v_exp_f32", v(S + i), v(S + i)) for i in range(8)] + [nop(0)]
    o += [valu("v_cvt_pk_bf16_f32", v(P + i), v(S + 2 * i), v(S + 2 * i + 1)) for i in range(4)] + [wait(lgkm=0), nop(1)]
    o += [mfma(v(Lr, 4), a(aONE, 4), v(P, 4), v(Lr, 4))] + [mfma(v(O + 4 * j, 4), v(V + 4 * j, 4), v(P, 4), v(O + 4 * j, 4)) for j in range(8)]
    o += loop("L_spv") + [nop(8), valu("v_rcp_f32", v(Lr), v(Lr)), nop(0)]
    o += [valu("v_mul_f32", v(O + i), v(O + i), v(Lr)) for i in range(32)]
    for j in range(8):
        o += [valu("v_cvt_pk_bf16_f32", v(O + 4 * j + i), v(O + 4 * j + 2 * i), v(O + 4 * j + 2 * i + 1)) for i in range(2)]
    o += [bstore(v(O + 4 * j, 2), v(vFr), SO, sO, 32 * j, op="buffer_store_dwordx2") for j in range(8)] + [wait(vm=0)]
    o += [label("L_snext"), salu("s_add_u32", sI, sI, 1), scmp("s_cmp_lt_u32", sI, 7), branch("s_cbranch_scc1", "L_ssub"),
          salu("s_add_u32", sRound, sRound, 1), scmp("s_cmp_lt_u32", sRound, 4), branch("s_cbranch_scc1", "L_sround")]
    return o

def build():
    VA = {0: 8, 1: 8, 2: 12, 3: 12}
    FA = step(ORDER7, True, plan_a(True), 2)
    PA = {p: step(ORDER7, False, plan_a(p != 3), VA[p], "L_exitA" if p == 3 else None) for p in range(4)}
    VB = {0: 11, 1: 7, 2: 9, 3: 13}; VFB = {0: 4, 1: 8, 2: 9, 3: 9}
    ordb = lambda p: ORDER7 if p == 0 else ORDER6
    FB = {p: step(ordb(p), True, plan_b(p), VFB[p], zero6=False) for p in range(4)}
    PB = {p: step(ordb(p), False, plan_b(p), VB[p], "L_exitB") for p in range(4)}
    if OPT.get("verbose"):
        print("A steps", [PA[p][3] for p in range(4)], file=sys.stderr)
        print("B steps", [PB[p][3] for p in range(4)], "barrier intervals", [PB[p][3] - PB[p][2] + PB[(p + 1) % 4][2] for p in range(4)], file=sys.stderr)
    both = lambda s_: s_[0] + s_[1]
    jump = lambda l: [branch("s_branch", l)]
    pro = prologue()
    sel = [scmp("s_cmp_eq_u32", sRole, 0), branch("s_cbranch_scc1", "L_headA"), branch("s_branch", "L_headB")]
    ex = lambda r: stamp() + [salu("s_sub_u32", sRound, sRound, 1), scmp("s_cmp_eq_u32", sRound, 0), branch("s_cbranch_scc1", f"L_tail{r}")]
    exA, exB, bA, bB, hA, hB, tA, tB = ex("A"), ex("B"), boundary("A"), boundary("B"), head0("A") + stamp(), head0("B") + stamp(), tail("A"), tail("B")
    fin = stamp() + ([wait(vm=0)] + stamp() if OPT["stamps"] else []) + dbg_end() + \
        [scmp("s_cmp_eq_u32", sFlag, 0), branch("s_cbranch_scc1", "L_end")]
    sl = slow()
    prog = pro + sel
    prog += [label("L_exitB")] + exB + bB + [label("L_headA")] + hA + both(FA)
    prog += [label("L_pa1")] + both(PA[1]) + both(PA[2]) + both(PA[3]) + both(PA[0]) + jump("L_pa1")
    prog += [label("L_exitA")] + exA + bA + [label("L_headB")] + hB + enter_b() + both(FB[0])
    prog += [label("L_pb1")] + both(PB[1]) + [label("L_pb2")] + both(PB[2]) + [label("L_pb3")] + both(PB[3]) + [label("L_pb0")] + both(PB[0]) + jump("L_pb1")
    for w in (1, 2, 3): prog += [label(f"L_fb{w}")] + both(FB[w]) + jump(f"L_pb{(w + 1) % 4}")
    prog += [label("L_tailB")] + tB + jump("L_fin") + [label("L_tailA")] + tA + [label("L_fin")] + fin + sl + [label("L_end"), raw("s_endpgm")]
    prog, far = expand(prog, "emit")
    k = next(i for i, x in enumerate(prog) if x.text == "L_exitB:")
    prog = prog[:k] + far + prog[k:]
    errs = check(sl, "slow")
    for w in range(4):
        ra = hA + both(FA) + flat(both(PA[j % 4]) for j in range(1, 15)) + PA[3][0] + exA
        rb = hB + enter_b() + both(FB[w]) + flat(both(PB[(w + j) % 4]) for j in range(1, 15)) + PB[(w + 15) % 4][0] + exB
        errs += check(pro + sel + expand(ra, "on") + expand(bA + rb + bB + ra + bA + rb + tB + fin, "off"), f"AB w{w}")
        errs += check(pro + sel + expand(rb, "on") + expand(bB + ra + bA + rb + bB + ra + tA + fin, "off"), f"BA w{w}")
    errs = list(dict.fromkeys(errs))
    for e in errs[:40]: print("CHECK:", e, file=sys.stderr)
    return prog, errs

HEADER = """; Attention forward, B=16 H=32 Sq=848 Sk=512 D=128, bf16 (written by the generator gen/gen.py).
; One workgroup per CU, four heads per pair of workgroups. Per head one workgroup takes rows 0..447 (round A: 7 x 16 rows
; S^T = K Q^T and O^T = V^T P^T with 16x16x32 MFMA; K/V stream through an LDS ring, Q/O through per-wave LDS staging.
; exp2 runs without max subtraction; every row sum is range-checked and rows outside [2^-24, 2^40] are recomputed
; @launch grid=(256,1,1) block=(256,1,1) lds=%d
.amdgcn_target "amdgcn-amd-amdhsa--gfx950"
.text
.globl %s
.p2align 8
.type %s,@function
%s:
"""
FOOTER = """.section .rodata,"a"
.p2align 6
.amdhsa_kernel %s
  .amdhsa_next_free_vgpr 512
  .amdhsa_next_free_sgpr 96
  .amdhsa_accum_offset 256
  .amdhsa_group_segment_fixed_size 0
  .amdhsa_kernarg_size 48
  .amdhsa_user_sgpr_count 2
  .amdhsa_user_sgpr_kernarg_segment_ptr 1
  .amdhsa_system_sgpr_workgroup_id_x 1
  .amdhsa_float_denorm_mode_32 3
.end_amdhsa_kernel
"""

def emit(path):
    prog, errs = build()
    with open(path, "w") as f:
        f.write(HEADER % (LDS, KNAME, KNAME, KNAME))
        for x in prog:
            if x.text: f.write(("" if x.text.endswith(":") else "    ") + x.text + "\n")
        f.write(FOOTER % KNAME)
    return errs

if __name__ == "__main__":
    out = sys.argv[1]
    for kv in sys.argv[2:]:
        k, val = kv.split("=")
        OPT[k] = val.replace("+", " ")
    sys.exit(1 if emit(out) else 0)
```

```python
import sys, struct, math
from asmlib import *

KNAME = "standalone__gqa_softmax__near_ridge_kernel"
OPT = dict(kv="nt", q="nt", o="nt", stamps=False)

HEAD_Q = 848 * 256
HEAD_KV = 512 * 256
QBYTES = 512 * HEAD_Q
PITCH = 1056
BLK = 8 * PITCH
SLOT = 2 * BLK
STG0 = 3 * SLOT
STGW = 6 * 4096
LSUM = STG0 + 4 * STGW
LDS = LSUM + 1024
ORDER7 = [0, 1, 2, 6, 3, 4, 5]
ORDER6 = [0, 1, 2, 3, 4, 5]

vS, vT, vP = 192, 200, 208
vK, vV, vKb, vVb, vSt, vLin, vSw0, vSw1, vQa, vOw, vFr, vStb = range(212, 224)
vTMP = 224
vQx = 232
vOx = 235
vRc = 242
vMx, vMn, vQ6 = 250, 251, 255
aQ, aQ6n, aK, aV, aL, aONE, aO6 = 0, 112, 128, 160, 192, 220, 224
SK, SV, SQ, SO = "s[4:7]", "s[8:11]", "s[12:15]", "s[16:19]"
(sW, sC, sRd, sTop, sW2112, sKV, sQ, sO, sSM, sCnt, sRound, sCur0, sCur6, sNx0, sNx6,
 sE0, sE6, sF0, sF6, sHead, sFlag, sStg, sT0, sT1, sT2, sLo, sSpan, sPair, sRole, sI, sJ) = [f"s{i}" for i in range(28, 59)]

def v(i, n=1): return R("v", i, n)
def a(i, n=1): return R("a", i, n)
def Oreg(t, j): return a(aO6 + 4 * j, 4) if t == 6 else v(32 * t + 4 * j, 4)
def fbits(x): return struct.unpack("<I", struct.pack("<f", x))[0]
L_LO, L_HI = fbits(2.0 ** -24), fbits(2.0 ** 40)

def qk(t, i):
    hb, ks = i >> 2, i & 3
    d = v(vS + 4 * hb, 4)
    return mfma(d, a(aK + 4 * i, 4), a(aQ + 16 * t + 4 * ks, 4), 0 if ks == 0 else d)
def pv(t, j, first):
    d = Oreg(t, j)
    return mfma(d, a(aV + 4 * j, 4), v(vP, 4), 0 if first else d)
def summ(t, first):
    d = a(aL + 4 * t, 4)
    return mfma(d, a(aONE, 4), v(vP, 4), 0 if first else d)

def softmax_groups():
    m = lambda i: valu("v_mul_f32", v(vT + i), sC, v(vS + i))
    e = lambda i: valu("v_exp_f32", v(vT + i), v(vT + i))
    c = lambda i: valu("v_cvt_pk_bf16_f32", v(vP + i), v(vT + 2 * i), v(vT + 2 * i + 1))
    return [[m(0), m(1)], [e(0)], [e(1)], [m(2), m(3)], [e(2)], [m(4), m(5)], [e(3)], [m(6), m(7)],
            [e(4)], [e(5)], [c(0), c(1)], [e(6)], [e(7)], [c(2), c(3)]]
HEAD0, HEADL = 8, 7

def kread(i): return dsread("ds_read_b128", a(aK + 4 * i, 4), v(vK), (i >> 2) * 512 + (i & 3) * 64)
def vread(j): return [dsread("ds_read_b64_tr_b16", a(aV + 4 * j + 2 * hb, 2), v(vV), BLK + hb * 512 + j * 32) for hb in (0, 1)]

def gap_cost(ins):
    t = 4; prev = "mfma"
    for x in ins:
        k = x.kind
        if k in ("label", "need", "reset"): continue
        if k in VAL:
            if prev == "ds": t += 4
            t = max(t, 8) + (8 if k == "trans" else 4); prev = "valu"
        elif k == "dsr":
            if prev == "valu": t += 4
            t += 4; prev = "ds"
        else:
            if prev == "ds": t += 4
            t += {"dma": 12, "vst": 24, "barrier": 13, "branch": 8}.get(k, 4); prev = k
    if prev == "ds": t += 4
    return max(16, t)

class Stub(I):
    __slots__ = ("code", "skip", "name")
    n = 0
    def __init__(self, code, skip=()):
        Stub.n += 1
        self.name = f"L_stub{Stub.n}"; self.code = code; self.skip = list(skip)
        I.__init__(self, f"s_cbranch_vccnz {self.name}", "branch")
def expand(seq, mode):
    out = []; far = []
    for x in seq:
        if not isinstance(x, Stub): out.append(x); continue
        br = I(x.text, "branch")
        if mode == "emit":
            out += [br] + x.skip + [label(x.name + "r")]
            far += [label(x.name)] + x.code + [branch("s_branch", x.name + "r")]
        elif mode == "on": out += [br] + x.code + [I("s_branch", "branch")]
        else: out += [br] + x.skip
    return (out, far) if mode == "emit" else out

def step(order, first, plan, vmN, exit_label=None, zero6=True):
    n = len(order); NG = 17 * n
    at = lambda k, g: 17 * ((k - 1) % n) + g
    kvf, qf, of = OPT["kv"], OPT["q"], OPT["o"]
    job = "st0" in plan
    ops = {
        "bar": [wait(vm=vmN), need("kv", "step"), barrier()],
        "d0": [dma(v(vLin), SK, sKV, 0, kvf, "kv")], "d1": [dma(v(vLin), SK, sKV, 1024, kvf, "kv")],
        "d2": [dma(v(vLin), SV, sKV, 0, kvf, "kv")], "d3": [dma(v(vLin), SV, sKV, 1024, kvf, "kv")],
        "jr": [dsread("ds_read_b128", v(vTMP, 4), v(vSt), 0), dsread("ds_read_b128", v(vTMP + 4, 4), v(vSt), 1024)],
        "st0": [bstore(v(vTMP, 4), v(vSw0), SO, sO, 0, of)], "st1": [bstore(v(vTMP + 4, 4), v(vSw1), SO, sO, 1024, of)],
        "q0": [dma(v(vSw0), SQ, sQ, 0, qf, "q")], "q1": [dma(v(vSw1), SQ, sQ, 1024, qf, "q")],
        "upk": [valu("v_add_u32", v(vK), sRd, v(vKb))], "upv": [valu("v_add_u32", v(vV), sRd, v(vVb))],
        "ups": [valu("v_add_u32", v(vSt), 2048, v(vSt))],
        "last": [branch("s_cbranch_scc1", exit_label)] if exit_label else [],
    }
    for j in range(8): ops[f"v{j}"] = vread(j); ops[f"k{j}"] = [kread(j)]
    body = [[] for _ in range(NG)]; pre = [[] for _ in range(NG)]
    free = set(); extra = []; idx = {}
    for name, pos in plan.items():
        i = at(pos[0], pos[1]); idx[name] = i
        if len(pos) > 2: extra.append((i, ops[name]))
        else: free.add(i); body[i] += ops.get(name, [])
    for k in range(n):
        gaps = [at(k, g) for g in range(7, 17)] + [at(k + 1, g) for g in range(7)]
        nf = [sum(i in free for i in gaps[:10]), sum(i in free for i in gaps[10:])]
        assert sum(nf) == 3, (k, nf)
        if k == 0: assert 10 - nf[0] == HEAD0
        if k == n - 1: assert 10 - nf[0] == HEADL
        gs = softmax_groups()
        for i in gaps:
            if i not in free: body[i] += gs.pop(0)
    for i, ins in extra: body[i] += ins
    ms = [None] * NG
    for k in range(n):
        t, tp = order[k], order[k - 1]
        z = first and (tp != 6 or zero6)
        pvs = [pv(tp, j, z) for j in range(8)]
        seq = [qk(t, i) for i in range(8)] + ((pvs + [summ(tp, z)]) if k == 0 else ([summ(tp, z)] + pvs))
        for g in range(17): ms[at(k, g)] = seq[g]
    def can(i): return not pre[i] and (not body[i] or body[i][0].kind in VAL)
    def place(ins, lo, hi, latest=True):
        cand = [i for i in range(lo, hi) if can(i)]
        assert cand, (ins.text, lo, hi)
        i = cand[-1] if latest else cand[0]
        pre[i].append(ins); return i
    pend = [(-7, x) for j in range(4) for x in vread(j)]
    waits = []
    for i in range(NG):
        cons = [(ms[i], i)] + [(x, i) for x in body[i] if x.kind == "vst"]
        for y, _ in cons:
            hit = [p for p, (gi, x) in enumerate(pend) if x.wr & (y.rd | y.rdC)]
            if not hit: continue
            p = max(hit)
            cand = [h for h in range(max(pend[p][0] + 1, 0), i) if can(h)]
            assert cand, (y.text, i)
            h = cand[-1]
            while p + 1 < len(pend) and pend[p + 1][0] <= h - 6: p += 1
            pre[h].append(wait(lgkm=sum(1 for gi, x in pend[p + 1:] if gi < h)))
            pend = pend[p + 1:]
        pend += [(i, x) for x in body[i] if x.kind == "dsr"]
    m0 = {"d0": salu("s_mov_b32", "m0", sRd), "d1": salu("s_add_u32", "m0", sRd, 32),
          "d2": salu("s_add_u32", "m0", sRd, BLK), "d3": salu("s_add_u32", "m0", sRd, BLK + 32),
          "q0": salu("s_mov_b32", "m0", sSM), "q1": salu("s_mov_b32", "m0", sSM)}
    dm = sorted((idx[nm], nm) for nm in m0 if nm in idx)
    prev = (-1, None); m0pos = {}
    for i, nm in dm:
        if not (nm == "q1" and prev[1] == "q0"): m0pos[nm] = place(m0[nm], prev[0] + 1, i)
        prev = (i, nm)
    assert idx["bar"] < min(idx[d] for d in ("d0", "d1", "d2", "d3"))
    assert idx["bar"] > at(1, 14)
    lastd = max(idx[d] for d in ("d0", "d1", "d2", "d3"))
    up = min(idx["upk"], idx["upv"])
    cand = [i for i in range(max(m0pos[d] for d in ("d0", "d1", "d2", "d3")) + 1, up) if can(i)]
    pair = [(x, y) for x, y in zip(cand, cand[1:]) if all(not pre[z] or pre[z][0].kind == "wait" or pre[z][0].text.startswith("s_mov") for z in range(x, y))]
    x, y = pair[0]
    pre[x].append(salu("s_sub_u32", sRd, sRd, SLOT)); pre[y].append(salu("s_cselect_b32", sRd, sTop, sRd))
    lo = max(y, lastd) + 1
    hi = idx["last"]
    if exit_label: hi = place(salu("s_sub_u32", sCnt, sCnt, 1), lo, hi)
    place(salu("s_add_u32", sKV, sKV, 8192), lo, hi, False)
    if job:
        place(salu("s_add_u32", sO, sO, 2048), max(lo, idx["st1"] + 1), hi, False)
        place(salu("s_add_u32", sQ, sQ, 2048), max(lo, idx["q1"] + 1), hi, False)
        place(salu("s_add_u32", sSM, sSM, 2048), max(lo, idx["q1"] + 1), hi, False)
        assert idx["jr"] < idx["ups"] and idx["st0"] < idx["q0"] and idx["jr"] < idx["st0"]
    assert idx["upv"] > idx["v7"] and idx["upk"] < idx["k0"]
    if first:
        todo = [f"Q{t_}" for t_ in order[3:]] + ["KV2"] + ([] if n == 7 else ["Q6"])
        hist = list(PRO)
        sites = []
        for k in range(1, n - 1):
            i = at(k, 12)
            while not can(i) or x < i <= y: i -= 1
            sites.append((i, order[k + 1]))
        i = NG - 1
        while not can(i): i -= 1
        sites += [(i, None), (idx["bar"], "bar")]
        done = 0
        for i, t_ in sorted(sites, key=lambda z: z[0]):
            hist += ["x" for h in range(done, i) for z in body[h] if z.kind in ("dma", "vst")]; done = i
            after = lambda nm: sum(1 if z == "x" else 4 for z in hist[hist.index(nm) + 1:])
            if t_ == "bar":
                body[i][0] = Stub([wait(vm=after("KV1"))], [body[i][0]]); continue
            code = []
            while todo and (t_ is None or f"Q{t_}" not in hist or sum(z != "x" for z in hist[hist.index(f"Q{t_}") + 1:]) < int(OPT.get("ahead", 2))):
                hist.append(todo[0]); code += pro_load(todo.pop(0))
            last = [z for z in hist if z != "x"][-1]
            if t_ is None and OPT.get("defer", "1") == "1":
                code += pro_load("KV3") + [salu("s_mov_b32", sKV, 4 * 8192)]; hist += ["x"] * 4
                if job:
                    code += [salu("s_mov_b32", "m0", sStg), salu("s_add_u32", sQ, sNx0, 2048),
                             dma(v(vSw0), SQ, sNx0, 0, qf, "qq"), dma(v(vSw1), SQ, sNx0, 1024, qf, "qq")] + ops["st0"] + ops["st1"]; hist += ["x"] * 4
                else: code += [salu("s_mov_b32", sQ, sNx0)]
            if code: code = [salu("s_mov_b32", sT2, "m0")] + code + [salu("s_mov_b32", "m0", sT2)]
            code.append(wait(vm=after(last if t_ is None else f"Q{t_}")))
            if t_ not in (None, 6): code += qreads(t_, tag="q0") + [wait(lgkm=0)]
            pre[i].append(Stub(code))
    out = []; t = 0; tb = None
    drop = OPT.get("drop", "").split()
    for i in range(NG):
        if i % 17 == 0:
            k = (i // 17 + 1) % n
            out.append(comment(f"slot {k}: QK subtile {order[k]}, PV subtile {order[k-1]}"))
        if i == 17 * (n - 1): cut = len(out) - 1
        if i == idx["bar"]: tb = t
        g = [x for x in pre[i] + body[i] if x.kind not in drop]
        out.append(ms[i]); out += g; t += gap_cost(g)
    return out[:cut], out[cut:], tb, t

PRO = ["KV0", "Q0", "Q1", "KV1", "Q2"]
def pro_load(x):
    n_ = int(x[-1]); o = []
    if x[0] == "K":
        for srd, off in ((SK, 0), (SV, BLK)):
            sl = (2 - n_) % 3 * SLOT + off
            tag = "kv" if n_ < 3 else "kv3"
            o += [salu("s_add_u32", "m0", sW2112, sl), salu("s_mov_b32", sT0, n_ * 8192), dma(v(vLin), srd, sT0, 0, OPT["kv"], tag),
                  salu("s_add_u32", "m0", sW2112, sl + 32), nop(0), dma(v(vLin), srd, sT0, 1024, OPT["kv"], tag)]
        return o
    if n_ == 6: return q6loads(sCur6)
    return [salu("s_add_u32", "m0", sStg, 4096 * n_), salu("s_add_u32", sT0, sCur0, 4096 * n_)] + \
           [dma(v(vSw1 if n & 1 else vSw0), SQ, sT0, 1024 * n, OPT["q"], "q0") for n in range(4)]

def vk_sites(n, v67=(7, 7)):
    L = n - 1
    return {"v0": (0, 10), "v1": (0, 10), "v2": (0, 14), "v3": (0, 14), "v4": (1, 1), "v5": (1, 1), "v6": (1, v67[0]), "v7": (1, v67[1]),
            "k0": (L, 1), "k1": (L, 1), "k2": (L, 5), "k3": (L, 5), "k4": (L, 8), "k5": (L, 8), "k6": (L, 11), "k7": (L, 11), "last": (L, 16)}

def plan_a(job):
    p = vk_sites(7)
    p.update({"bar": (2, 0), "d0": (2, 4), "d1": (2, 9), "d2": (2, 14), "d3": (3, 2), "upk": (3, 13), "upv": (3, 13)})
    if job: p.update({"jr": (3, 9), "st0": (4, 3), "st1": (4, 9), "q0": (4, 14), "q1": (5, 2), "ups": (5, 10)})
    else: p.update({"e0": (3, 9), "e1": (4, 3), "e2": (4, 9), "e3": (4, 14), "e4": (5, 2), "e5": (5, 10)})
    return p

def plan_b(p_):
    if p_ == 0:
        p = vk_sites(7, (7, 9))
        p.update({"e0": (2, 3), "bar": (2, 10), "d0": (2, 14), "d1": (3, 2), "d2": (3, 9), "d3": (3, 14), "e1": (4, 3),
                  "upk": (4, 9), "upv": (4, 9), "e2": (4, 14), "e3": (5, 2), "e4": (5, 10)})
        return p
    p = vk_sites(6)
    p["jr"] = (1, 7)
    if p_ == 1: p.update({"bar": (1, 15), "d0": (2, 3), "d1": (2, 8), "d2": (2, 13), "d3": (3, 1), "st0": (3, 8), "st1": (3, 13), "q0": (4, 1), "q1": (4, 9)})
    if p_ == 2: p.update({"st0": (1, 15), "bar": (2, 1), "d0": (2, 8), "d1": (2, 13), "d2": (3, 1), "d3": (3, 8), "st1": (3, 13), "q0": (4, 1), "q1": (4, 9)})
    if p_ == 3: p.update({"st0": (1, 15), "bar": (2, 5), "d0": (2, 9), "d1": (2, 13), "d2": (3, 1), "d3": (3, 8), "st1": (3, 13), "q0": (4, 1), "q1": (4, 9)})
    p.update({"upk": (4, 12, "x"), "upv": (4, 14, "x"), "ups": (4, 16, "x")})
    return p

def stamp():
    if not OPT["stamps"]: return []
    return [raw("s_memtime s[60:61]", "smem", (), regs("s[60:61]")), raw("s_memrealtime s[62:63]", "smem", (), regs("s[62:63]")),
            wait(lgkm=0), valu("v_mov_b32", "v252", "s60"), valu("v_mov_b32", "v253", "s62"), valu("v_mov_b32", "v254", 0),
            raw("s_mov_b64 exec, 1", "salu"),
            bstore("v[252:253]", "v254", "s[64:67]", "s68", op="buffer_store_dwordx2"),
            raw("s_mov_b64 exec, -1", "salu"), salu("s_add_u32", "s68", "s68", 8), nop(3)]
def stamp_init():
    if not OPT["stamps"]: return []
    return [raw("s_load_dwordx2 s[64:65], s[0:1], 40", "smem", (), regs("s[64:65]")), wait(lgkm=0),
            salu("s_mov_b32", "s66", 1 << 20), salu("s_mov_b32", "s67", "0x20000"),
            salu("s_lshl_b32", "s68", "s2", 2), salu("s_add_u32", "s68", "s68", sW), salu("s_lshl_b32", "s68", "s68", 8)] + stamp()
def dbg_begin():
    if not OPT.get("dbg"): return []
    return [raw("s_memtime s[70:71]", "smem", (), regs("s[70:71]")), raw("s_memrealtime s[72:73]", "smem", (), regs("s[72:73]")),
            raw("s_load_dwordx2 s[76:77], s[0:1], 32", "smem", (), regs("s[76:77]")), wait(lgkm=0),
            salu("s_mov_b32", "s78", 64), salu("s_mov_b32", "s79", "0x20000")]
def dbg_end():
    if not OPT.get("dbg"): return []
    return [wait(vm=0), raw("s_memtime s[60:61]", "smem", (), regs("s[60:61]")), raw("s_memrealtime s[62:63]", "smem", (), regs("s[62:63]")),
            wait(lgkm=0), salu("s_sub_u32", "s60", "s60", "s70"), salu("s_sub_u32", "s62", "s62", "s72"),
            salu("s_lshl_b32", "s61", sW, 8), salu("s_add_u32", "s61", "s61", "s2"), salu("s_lshl_b32", "s61", "s61", 3),
            valu("v_mov_b32", "v252", "s60"), valu("v_mov_b32", "v253", "s62"), valu("v_mov_b32", "v254", "s61"),
            raw("s_mov_b64 exec, 1", "salu"),
            bstore("v[252:253]", "v254", "s[76:79]", 0, op="buffer_store_dwordx2"), raw("s_mov_b64 exec, -1", "salu")] + probe()
def probe():
    m = OPT.get("probe")
    if not m: return []
    tgt = {"fix": [salu("s_mov_b32", "s61", 15000)],
           "cyc": [salu("s_mul_hi_u32", "s61", "s60", "0x1999999a")],
           "dbl": [salu("s_lshl_b32", "s61", "s62", 1)]}[m]
    return tgt + [label("L_probe"), raw("s_memrealtime s[62:63]", "smem", (), regs("s[62:63]")), wait(lgkm=0),
                  salu("s_sub_u32", "s62", "s62", "s72"), scmp("s_cmp_lt_u32", "s62", "s61"), branch("s_cbranch_scc1", "L_probe")]

def flat(gs): return [x for g in gs for x in g]
def spaced(seq):
    out = []
    for x in seq:
        if out and out[-1].kind == "trans" and x.kind == "valu" and out[-1].wr & x.rd: out.append(nop(0))
        out.append(x)
    return out
def weave(ms, fill, pres=()):
    out = []; fill = list(fill); pres = list(pres)
    for m_ in ms:
        out.append(m_)
        g = fill.pop(0) if fill else []
        if pres and (not g or g[0].kind in VAL): out.append(pres.pop(0))
        out += g
    return out + flat(fill) + pres
def pairs(seq): return [seq[i:i + 2] for i in range(0, len(seq), 2)]

def qaddr(ks): return v(vQa) if ks == 0 else v(vQx + ks - 1)
def oaddr(j): return v(vOw) if j == 0 else v(vOx + j - 1)
def qreads(t, slot=None, tag="q"):
    slot = t if slot is None else slot
    return ([need(tag, 4 * t + 4)] if t < 6 else []) + \
        [dsread("ds_read_b128", a(aQ + 16 * t + 4 * ks, 4), qaddr(ks), 4096 * slot) for ks in range(4)]
def q6bounce(slot): return [dswrite("ds_write_b128", v(vStb), a(aQ6n + 4 * n, 4), 4096 * slot + 1024 * n) for n in range(4)]
def q6loads(soff): return [bload(a(aQ + 96 + 4 * ks, 4), v(vQ6), SQ, soff, 64 * ks, OPT["q"]) for ks in range(4)]
def readback(slot, dst): return [dsread("ds_read_b128", v(dst + 4 * n, 4), v(vStb), 4096 * slot + 1024 * n) for n in range(4)]
def stores(src, soff): return [bstore(v(src + 4 * n, 4), v(vSw1 if n & 1 else vSw0), SO, soff, 1024 * n, OPT["o"]) for n in range(4)]

def flag(mask):
    return [salu("s_lshl_b32", sFlag, sFlag, 1), scmp("s_cmp_lg_u64", mask, 0), salu("s_addc_u32", sFlag, sFlag, 0)]
def l_own():
    r = lambda t: v(vRc + t)
    g = pairs([valu("v_accvgpr_read_b32", r(t), a(aL + 4 * t)) for t in range(6)])
    g += [[valu("v_max3_u32", v(vMx), r(0), r(1), r(2)), valu("v_min3_u32", v(vMn), r(0), r(1), r(2))],
          [valu("v_max3_u32", v(vMx), v(vMx), r(3), r(4)), valu("v_min3_u32", v(vMn), v(vMn), r(3), r(4))],
          [valu("v_max_u32", v(vMx), v(vMx), r(5)), valu("v_min_u32", v(vMn), v(vMn), r(5))],
          [valu("v_subrev_u32", v(vMx), sLo, v(vMx)), valu("v_subrev_u32", v(vMn), sLo, v(vMn))],
          [valu("v_max_u32", v(vMx), v(vMx), v(vMn)), valu("v_cmp_lt_u32", "vcc", sSpan, v(vMx))]]
    g += [[valu("v_rcp_f32", r(t), r(t))] for t in range(6)]
    return g, flag("vcc")
def l_six():
    r = v(vRc + 6)
    return [valu("v_subrev_u32", v(vMx), sLo, r), valu("v_cmp_lt_u32", "vcc", sSpan, v(vMx)), valu("v_rcp_f32", r, r), nop(1)] + flag("vcc")

def scale_pack(t, base, nblk):
    rp = v(vRc + (t & ~1), 2)
    mods = "op_sel_hi:[1,0]" if t % 2 == 0 else "op_sel:[0,1] op_sel_hi:[1,1]"
    o = [valu("v_pk_mul_f32", v(base + 2 * i, 2), v(base + 2 * i, 2), rp, mods=mods) for i in range(2 * nblk)]
    for b in range(nblk):
        o += [valu("v_cvt_pk_bf16_f32", v(base + 4 * b + i), v(base + 4 * b + 2 * i), v(base + 4 * b + 2 * i + 1)) for i in range(2)]
    return o
def epi(t, slot, tmp=None, side=()):
    o = []; side = list(side)
    for j0 in range(0, 8, 2):
        if t == 6:
            base = tmp + 4 * j0
            o += [valu("v_accvgpr_read_b32", v(base + i), a(aO6 + 4 * j0 + i)) for i in range(8)]
        else:
            base = 32 * t + 4 * j0
        o += scale_pack(t, base, 2)
        o += [dswrite("ds_write_b64", oaddr(j0 + b), v(base + 4 * b, 2), 4096 * slot) for b in range(2)]
        if side: o += side.pop(0)
    return o

def red_put():
    w = [dswrite("ds_write_b128", v(vStb), a(aO6 + 4 * j, 4), 1024 * j) for j in range(8)]
    pre_ = [valu("v_lshrrev_b32", v(vMn), 2, v(vLin)), valu("v_and_b32", v(vMx), 255, v(vMn)), valu("v_lshrrev_b32", v(vMn), 9, v(vMn)),
            valu("v_lshl_add_u32", v(vMn), v(vMn), 8, v(vMx)), valu("v_add_u32", v(vMn), LSUM, v(vMn)), valu("v_add_u32", v(vMx), LSUM, v(vMx)),
            dswrite("ds_write_b32", v(vMn), a(aL + 24), 0)]
    return pre_, pairs(w)
def red_get(tmp):
    o = [valu("v_add_u32", v(vMn), STG0, v(vLin)), valu("v_add_u32", v(vTMP + 4), STG0 + 2 * STGW, v(vLin))]
    for w in range(4):
        ad = v(vMn) if w < 2 else v(vTMP + 4)
        o += [dsread("ds_read_b128", v(tmp + 8 * w + 4 * b, 4), ad, (w & 1) * STGW + 1024 * b) for b in range(2)]
    o += [dsread("ds_read_b32", v(vTMP + w), v(vMx), 256 * w) for w in range(4)]
    return o
def red_fin(tmp, soff):
    o = [valu("v_add_f32", v(vTMP), v(vTMP), v(vTMP + 1)), valu("v_add_f32", v(vTMP + 2), v(vTMP + 2), v(vTMP + 3)),
         valu("v_add_f32", v(vRc + 6), v(vTMP), v(vTMP + 2))]
    o += l_six()
    for x, y in ((0, 1), (2, 3), (0, 2)):
        o += [valu("v_pk_add_f32", v(tmp + 8 * x + 2 * i, 2), v(tmp + 8 * x + 2 * i, 2), v(tmp + 8 * y + 2 * i, 2)) for i in range(4)]
    o += scale_pack(6, tmp, 2)
    o += [salu("s_lshl_b32", sT2, sW, 6), salu("s_add_u32", sT2, sT2, soff)]
    o += [bstore(v(tmp + 4 * b, 2), v(vFr), SO, sT2, 32 * b, OPT["o"], op="buffer_store_dwordx2") for b in range(2)]
    return o

def next_bases():
    return [salu("s_add_u32", sHead, sHead, HEAD_Q),
            salu("s_add_u32", sNx0, sHead, sE0), salu("s_add_u32", sNx6, sHead, sE6),
            salu("s_mov_b32", sT0, sE0), salu("s_mov_b32", sE0, sF0), salu("s_mov_b32", sF0, sT0),
            salu("s_mov_b32", sT0, sE6), salu("s_mov_b32", sE6, sF6), salu("s_mov_b32", sF6, sT0)]

def head0(role):
    g = softmax_groups()[:HEAD0]
    if role == "A": return spaced(flat(g)) + [salu("s_mov_b32", sCnt, 3), wait(lgkm=0)]
    z = v(vTMP + 4, 4)
    zs = [mfma(a(aO6 + 4 * j, 4), z, z, 0) for j in range(8)] + [mfma(a(aL + 24, 4), z, z, 0)]
    return [valu("v_mov_b32", v(vTMP + 4 + i), 0) for i in range(4)] + g[0] + weave(zs, g[1:], [salu("s_mov_b32", sCnt, 14)]) + [wait(lgkm=0)]
def enter_b():
    o = []
    for w in (1, 2, 3): o += [scmp("s_cmp_eq_u32", sW, w), branch("s_cbranch_scc1", f"L_fb{w}")]
    return o

def boundary(prev):
    ql = q6loads(sNx6)
    o = [wait(vm=8)] + [ql[0]] + qreads(0) + spaced(flat(softmax_groups()[HEADL:]))
    sal = [salu("s_mov_b32", "s18", QBYTES), salu("s_mov_b32", sO, sCur0), salu("s_mov_b32", sT1, sCur6),
           salu("s_mov_b32", sCur0, sNx0), salu("s_mov_b32", sCur6, sNx6)] + next_bases() + \
          [salu("s_mov_b32", sQ, sNx0), salu("s_mov_b32", sSM, sStg)]
    q1, q2 = qreads(1), qreads(2)
    o += [nop(1)] + weave([summ(5, False)] + [pv(5, j, False) for j in range(8)],
                          [q1[:3]] + [vread(j) for j in range(4)] + [q1[3:], q2[:3], q2[3:], [ql[1]]])
    o.append(wait(lgkm=14))
    ql = q6loads(sCur6)
    lg, fl = l_own()
    o += weave([qk(0, i) for i in range(8)], lg[:8], sal[:8])
    for g, s_ in zip(lg[8:], sal[8:14]): o += g + [s_]
    o += sal[14:] + fl + [valu("v_mov_b32", v(vSt), v(vStb)), ql[2]]
    dis = [scmp("s_cmp_eq_u32", sRound, 1), salu("s_cselect_b32", "s14", 0, "s14")]
    if prev == "A":
        o += [valu("v_accvgpr_read_b32", v(vRc + 6), a(aL + 24))] + l_six()
        o += epi(1, 1) + [ql[3]] + dis
        o += epi(6, 0, tmp=32) + readback(0, 32) + qreads(3)
        o += epi(2, 2)
        o += [wait(lgkm=8)] + epi(0, 0, side=[[x] for x in stores(32, sT1)]) + qreads(4)
        o += epi(3, 3) + [wait(vm=8)] + qreads(5) + epi(4, 4) + epi(5, 5)
    else:
        p0, pw = red_put()
        o += p0 + epi(2, 2, side=pw) + [ql[3]] + dis + qreads(3) + [wait(lgkm=4), barrier()] + red_get(64)
        o += epi(3, 3) + qreads(4) + [wait(lgkm=12), barrier()]
        o += red_fin(64, sT1)
        o += epi(0, 0) + epi(1, 1) + [wait(vm=6)] + qreads(5) + epi(4, 4) + epi(5, 5)
    o += [reset("q"), salu("s_mov_b64", "vcc", 0)]
    return o

def tail(prev):
    keep = OPT["o"]; OPT["o"] = OPT.get("ot", keep)
    o = tail_(prev); OPT["o"] = keep
    return o
def tail_(prev):
    o = spaced(flat(softmax_groups()[HEADL:])) + [salu("s_mov_b32", "s18", QBYTES), wait(vm=0)]
    lg, fl = l_own()
    o += [summ(5, False)] + [pv(5, j, False) for j in range(8)] + spaced(flat(lg)) + fl
    def st(t): return [[salu("s_add_u32", sT1, sCur0, 4096 * t)] + stores(32 * t, sT1)[:1]] + [[x] for x in stores(32 * t, sT1)[1:]]
    if prev == "A":
        o += [valu("v_accvgpr_read_b32", v(vRc + 6), a(aL + 24))] + l_six()
        o += epi(1, 1) + readback(1, 32) + epi(0, 0) + readback(0, 0)
        seq = [1, 0, 2, 3, 4, 5]
        for i in range(2, 6): o += [wait(lgkm=12)] + epi(seq[i], seq[i], side=st(seq[i - 2])) + readback(seq[i], 32 * seq[i])
        o += [wait(lgkm=12)] + epi(6, 0, tmp=32, side=st(4)) + readback(0, 32)
        o += [wait(lgkm=12)] + flat(st(5)) + [wait(lgkm=0)] + stores(32, sCur6)
    else:
        p0, pw = red_put()
        o += p0 + epi(2, 2, side=pw) + readback(2, 64) + [wait(lgkm=4), barrier()]
        o += epi(3, 3) + readback(3, 96) + [wait(lgkm=12)] + epi(4, 4, side=st(2)) + red_get(64) + [wait(lgkm=12)]
        o += flat(st(3)) + readback(4, 128) + [wait(lgkm=4), barrier()]
        o += red_fin(64, sCur6)
        o += [wait(lgkm=0)] + epi(5, 5, side=st(4)) + readback(5, 160) + epi(0, 0) + readback(0, 0)
        o += [wait(lgkm=12)] + epi(1, 1, side=st(5)) + readback(1, 32) + [wait(lgkm=12)] + flat(st(0)) + [wait(lgkm=0)] + flat(st(1))
    return o

def role_bases():
    return [salu("s_mul_i32", sE0, sW, 7 * 4096), salu("s_add_u32", sE6, sE0, 6 * 4096),
            salu("s_mul_i32", sF0, sW, 6 * 4096), salu("s_add_u32", sF0, sF0, 448 * 256), salu("s_mov_b32", sF6, 832 * 256),
            scmp("s_cmp_eq_u32", sRole, 0),
            salu("s_cselect_b32", sT0, sE0, sF0), salu("s_cselect_b32", sF0, sF0, sE0), salu("s_mov_b32", sE0, sT0),
            salu("s_cselect_b32", sT0, sE6, sF6), salu("s_cselect_b32", sF6, sF6, sE6), salu("s_mov_b32", sE6, sT0),
            salu("s_mul_i32", sHead, sPair, 4 * HEAD_Q), salu("s_sub_u32", sHead, sHead, HEAD_Q)]

def prologue():
    c = math.log2(math.e) / math.sqrt(128.0)
    L, G, Rw, X, Y, Z = (vTMP + i for i in range(6))
    o = [scmp("s_cmp_ge_u32", "s2", 256), branch("s_cbranch_scc1", "L_end")] + dbg_begin()
    o += [raw("s_load_dwordx4 s[20:23], s[0:1], 0", "smem", (), regs("s[20:23]")),
          raw("s_load_dwordx4 s[24:27], s[0:1], 16", "smem", (), regs("s[24:27]")),
          valu("v_lshrrev_b32", v(X), 6, "v0"), valu("v_and_b32", v(L), 63, "v0"),
          valu("v_readfirstlane_b32", sW, v(X)),
          valu("v_lshrrev_b32", v(G), 4, v(L)), valu("v_and_b32", v(Rw), 15, v(L)),
          salu("s_lshr_b32", sT0, "s2", 4), salu("s_lshl_b32", sT0, sT0, 3), salu("s_and_b32", sT1, "s2", 7),
          salu("s_add_u32", sPair, sT0, sT1), salu("s_bfe_u32", sRole, "s2", "0x10003")]
    if OPT.get("adj"): o += [salu("s_lshr_b32", sPair, "s2", 1), salu("s_and_b32", sRole, "s2", 1)]
    o += [
          salu("s_mul_i32", sW2112, sW, 2 * PITCH), salu("s_add_u32", sTop, sW2112, 2 * SLOT),
          salu("s_mul_i32", sStg, sW, STGW), salu("s_add_u32", sStg, sStg, STG0)]
    o += role_bases()
    o += next_bases() + [salu("s_mov_b32", sCur0, sNx0), salu("s_mov_b32", sCur6, sNx6)] + next_bases()
    o += [comment("vLin = lane*16 + wave*2048, vStb = lane*16 + staging base"),
          valu("v_lshlrev_b32", v(Y), 4, v(L)), valu("v_add_u32", v(vStb), sStg, v(Y)),
          valu("v_lshl_add_u32", v(vLin), v(X), 11, v(Y)),
          comment("vSw0/1 = g*256 + ((lane&15) ^ s(rho))*16, rho = g (+4), s(rho) = rho | (rho&1)<<3"),
          valu("v_and_b32", v(Y), 1, v(G)), valu("v_lshl_add_u32", v(Y), v(Y), 3, v(G)),
          valu("v_xor_b32", v(Y), v(Y), v(Rw)), valu("v_lshlrev_b32", v(Y), 4, v(Y)),
          valu("v_lshl_add_u32", v(vSw0), v(G), 8, v(Y)), valu("v_xor_b32", v(vSw1), 64, v(vSw0)),
          valu("v_lshlrev_b32", v(Y), 4, v(G)), valu("v_lshl_add_u32", v(vQ6), v(Rw), 8, v(Y))]
    o += [wait(lgkm=0),
          salu("s_lshl_b32", sT0, sPair, 19),
          salu("s_add_u32", "s4", "s22", sT0), salu("s_addc_u32", "s5", "s23", 0), salu("s_mov_b32", "s6", 4 * HEAD_KV), salu("s_mov_b32", "s7", "0x20000"),
          salu("s_add_u32", "s8", "s24", sT0), salu("s_addc_u32", "s9", "s25", 0), salu("s_mov_b32", "s10", 4 * HEAD_KV), salu("s_mov_b32", "s11", "0x20000"),
          salu("s_mov_b32", "s12", "s20"), salu("s_mov_b32", "s13", "s21"), salu("s_mov_b32", "s14", QBYTES), salu("s_mov_b32", "s15", "0x20000"),
          salu("s_mov_b32", "s16", "s26"), salu("s_mov_b32", "s17", "s27"), salu("s_mov_b32", "s18", 0), salu("s_mov_b32", "s19", "0x20000")]
    o += stamp_init()
    o += pro_load(PRO[0])
    for i in range(int(OPT.get("stag", 0))):
        o += [scmp("s_cmp_eq_u32", sRole, 0), branch("s_cbranch_scc1", f"L_go{i}"), I("s_waitcnt vmcnt(0)", "other")]
        if i + 1 < int(OPT["stag"]): o += [I(x.text, "other") for x in pro_load(f"KV{i + 1}")]
        o += [label(f"L_go{i}")]
    for x in PRO[1:3]: o += pro_load(x)
    o += [comment("staging: Q fragment row*256 + (g ^ s)*16, O write row*256 + ((g>>1) ^ s)*16 + (g&1)*8; vFr = row*256 + g*8"),
          valu("v_and_b32", v(Y), 1, v(Rw)), valu("v_and_b32", v(Z), 7, v(Rw)), valu("v_lshl_add_u32", v(Y), v(Y), 3, v(Z)),
          valu("v_lshlrev_b32", v(Z), 8, v(Rw)), valu("v_lshl_add_u32", v(vFr), v(G), 3, v(Z)), valu("v_add_u32", v(Z), sStg, v(Z)),
          valu("v_xor_b32", v(X), v(Y), v(G)), valu("v_lshl_add_u32", v(vQa), v(X), 4, v(Z)),
          valu("v_lshrrev_b32", v(X), 1, v(G)), valu("v_xor_b32", v(X), v(Y), v(X)), valu("v_lshl_add_u32", v(vOw), v(X), 4, v(Z)),
          valu("v_and_b32", v(X), 1, v(G)), valu("v_lshl_add_u32", v(vOw), v(X), 3, v(vOw)),
          comment("ring: K piece row&7, line row>>3, chunk g; V piece (lane>>2)&7, line lane>>5, 8-byte chunk lane&3"),
          salu("s_mov_b32", sT0, PITCH),
          valu("v_and_b32", v(X), 7, v(Rw)), valu("v_mul_lo_u32", v(X), v(X), sT0),
          valu("v_lshrrev_b32", v(Y), 3, v(Rw)), valu("v_lshl_add_u32", v(X), v(Y), 8, v(X)),
          valu("v_lshl_add_u32", v(X), v(G), 4, v(X)), valu("v_subrev_u32", v(vKb), sW2112, v(X)),
          valu("v_bfe_u32", v(X), v(L), 2, 3), valu("v_mul_lo_u32", v(X), v(X), sT0),
          valu("v_lshrrev_b32", v(Y), 5, v(L)), valu("v_lshl_add_u32", v(X), v(Y), 8, v(X)),
          valu("v_and_b32", v(Y), 3, v(L)), valu("v_lshl_add_u32", v(X), v(Y), 3, v(X)),
          valu("v_subrev_u32", v(vVb), sW2112, v(X)),
          valu("v_add_u32", v(vK), sTop, v(vKb)), valu("v_add_u32", v(vV), sTop, v(vVb)),
          comment("row-sum operand: ones in rows 0,4,8,12"),
          valu("v_mov_b32", v(X), "0x3f803f80"), valu("v_cmp_eq_u32", "vcc", 0, v(Y)), nop(1),
          valu("v_cndmask_b32", v(X), 0, v(X), "vcc")]
    o += [valu("v_accvgpr_write_b32", a(aONE + i), v(X)) for i in range(4)]
    o += [salu("s_mov_b32", sC, hex(fbits(c))), salu("s_mov_b32", sRd, sTop), salu("s_mov_b32", sKV, 3 * 8192),
          salu("s_mov_b32", sQ, sNx0), salu("s_mov_b32", sO, 0), salu("s_mov_b32", sSM, sStg),
          salu("s_mov_b32", sRound, 4), salu("s_mov_b32", sFlag, 0),
          salu("s_mov_b32", sLo, hex(L_LO)), salu("s_mov_b32", sSpan, hex(L_HI - L_LO)),
          valu("v_mov_b32", v(vSt), v(vStb))]
    o += [valu("v_xor_b32", v(vQx + ks - 1), 64 * ks, v(vQa)) for ks in (1, 2, 3)]
    o += [valu("v_xor_b32", v(vOx + j - 1), 32 * j, v(vOw)) for j in range(1, 8)]
    if OPT.get("defer", "1") == "1": o += [salu("s_mov_b32", sKV, "0x40000000"), salu("s_mov_b32", sQ, "0x40000000")]
    o += pro_load(PRO[3])
    o += [salu("s_mov_b64", "vcc", -1), wait(vm=8), need("kv", 4), barrier()]
    o += [kread(i) for i in range(8)] + qreads(0, tag="q0") + pro_load(PRO[4]) + [wait(lgkm=0)]
    o += weave([qk(0, i) for i in range(8)], [vread(j) for j in range(4)])
    o += [wait(vm=8)] + qreads(1, tag="q0")
    return o

def slow():
    Q, S, P, O, K, V, Lr = 0, 16, 24, 32, 64, 96, 128
    M, M2, AK, AV, AL, AQ = 132, 133, 134, 135, 136, 137
    o = [label("L_slow"), wait(vm=0, lgkm=0), salu("s_mov_b32", "s14", QBYTES)] + role_bases()
    o += [salu("s_add_u32", sT0, sStg, sW2112), valu("v_add_u32", v(AK), sT0, v(vKb)), valu("v_add_u32", v(AV), sT0, v(vVb)),
          valu("v_and_b32", v(AL), 1023, v(vLin)), valu("v_mov_b32", v(AQ), v(vQ6)),
          salu("s_mov_b32", sRound, 0),
          label("L_sround")] + next_bases() + [salu("s_mov_b32", sI, 0),
          label("L_ssub"),
          scmp("s_cmp_eq_u32", sI, 6), salu("s_cselect_b32", sT1, 6, 7), salu("s_lshl_b32", sT0, sRound, 1), salu("s_sub_u32", sT1, sT1, sT0),
          scmp("s_bitcmp1_b32", sFlag, sT1), branch("s_cbranch_scc0", "L_snext"),
          salu("s_lshl_b32", sT0, sI, 12), salu("s_add_u32", sO, sNx0, sT0), scmp("s_cmp_eq_u32", sI, 6), salu("s_cselect_b32", sO, sNx6, sO)]
    o += [bload(v(Q + 4 * ks, 4), v(AQ), SQ, sO, 64 * ks) for ks in range(4)]
    def fetch(srd, off):
        r = []
        for n in range(8):
            r += [salu("s_add_u32", "m0", sStg, off + PITCH * n), salu("s_add_u32", sT0, sKV, 1024 * n), dma(v(AL), srd, sT0)]
        return r
    kr = [dsread("ds_read_b128", v(K + 4 * i, 4), v(AK), (i >> 2) * 512 + (i & 3) * 64) for i in range(8)]
    qks = [mfma(v(S + 4 * (i >> 2), 4), v(K + 4 * i, 4), v(Q + 4 * (i & 3), 4), 0 if i & 3 == 0 else v(S + 4 * (i >> 2), 4)) for i in range(8)]
    loop = lambda lab: [salu("s_add_u32", sKV, sKV, 8192), salu("s_add_u32", sJ, sJ, 1), scmp("s_cmp_lt_u32", sJ, 16), branch("s_cbranch_scc1", lab)]
    start = [salu("s_lshl_b32", sKV, sRound, 17), salu("s_mov_b32", sJ, 0)]
    o += [valu("v_mov_b32", v(M), "0xff800000")] + start + [label("L_smax")]
    o += fetch(SK, 0) + [wait(vm=0)] + kr + [wait(lgkm=0)] + qks + [nop(8)]
    o += [valu("v_max3_f32", v(M), v(M), v(S + 2 * i), v(S + 2 * i + 1)) for i in range(4)] + loop("L_smax")
    for sw in ("v_permlane32_swap_b32", "v_permlane16_swap_b32"):
        o += [valu("v_mov_b32", v(M2), v(M)), nop(1), I(f"{sw} v{M}, v{M2}", "valu", [f"v{M}", f"v{M2}"], [f"v{M}", f"v{M2}"]), nop(1),
              valu("v_max_f32", v(M), v(M), v(M2))]
    o += [valu("v_mov_b32", v(O + i), 0) for i in range(32)] + [valu("v_mov_b32", v(Lr + i), 0) for i in range(4)]
    o += start + [label("L_spv")]
    o += fetch(SK, 0) + fetch(SV, BLK) + [wait(vm=0)] + kr + [wait(lgkm=0)]
    o += [dsread("ds_read_b64_tr_b16", v(V + 4 * j + 2 * hb, 2), v(AV), BLK + hb * 512 + j * 32) for j in range(8) for hb in (0, 1)]
    o += qks + [nop(8)]
    o += [valu("v_sub_f32", v(S + i), v(S + i), v(M)) for i in range(8)] + [valu("v_mul_f32", v(S + i), sC, v(S + i)) for i in range(8)]
    o += [valu("v_exp_f32", v(S + i), v(S + i)) for i in range(8)] + [nop(0)]
    o += [valu("v_cvt_pk_bf16_f32", v(P + i), v(S + 2 * i), v(S + 2 * i + 1)) for i in range(4)] + [wait(lgkm=0), nop(1)]
    o += [mfma(v(Lr, 4), a(aONE, 4), v(P, 4), v(Lr, 4))] + [mfma(v(O + 4 * j, 4), v(V + 4 * j, 4), v(P, 4), v(O + 4 * j, 4)) for j in range(8)]
    o += loop("L_spv") + [nop(8), valu("v_rcp_f32", v(Lr), v(Lr)), nop(0)]
    o += [valu("v_mul_f32", v(O + i), v(O + i), v(Lr)) for i in range(32)]
    for j in range(8):
        o += [valu("v_cvt_pk_bf16_f32", v(O + 4 * j + i), v(O + 4 * j + 2 * i), v(O + 4 * j + 2 * i + 1)) for i in range(2)]
    o += [bstore(v(O + 4 * j, 2), v(vFr), SO, sO, 32 * j, op="buffer_store_dwordx2") for j in range(8)] + [wait(vm=0)]
    o += [label("L_snext"), salu("s_add_u32", sI, sI, 1), scmp("s_cmp_lt_u32", sI, 7), branch("s_cbranch_scc1", "L_ssub"),
          salu("s_add_u32", sRound, sRound, 1), scmp("s_cmp_lt_u32", sRound, 4), branch("s_cbranch_scc1", "L_sround")]
    return o

def build():
    VA = {0: 8, 1: 8, 2: 12, 3: 12}
    FA = step(ORDER7, True, plan_a(True), 2)
    PA = {p: step(ORDER7, False, plan_a(p != 3), VA[p], "L_exitA" if p == 3 else None) for p in range(4)}
    VB = {0: 11, 1: 7, 2: 9, 3: 13}; VFB = {0: 4, 1: 8, 2: 9, 3: 9}
    ordb = lambda p: ORDER7 if p == 0 else ORDER6
    FB = {p: step(ordb(p), True, plan_b(p), VFB[p], zero6=False) for p in range(4)}
    PB = {p: step(ordb(p), False, plan_b(p), VB[p], "L_exitB") for p in range(4)}
    if OPT.get("verbose"):
        print("A steps", [PA[p][3] for p in range(4)], file=sys.stderr)
        print("B steps", [PB[p][3] for p in range(4)], "barrier intervals", [PB[p][3] - PB[p][2] + PB[(p + 1) % 4][2] for p in range(4)], file=sys.stderr)
    both = lambda s_: s_[0] + s_[1]
    jump = lambda l: [branch("s_branch", l)]
    pro = prologue()
    sel = [scmp("s_cmp_eq_u32", sRole, 0), branch("s_cbranch_scc1", "L_headA"), branch("s_branch", "L_headB")]
    ex = lambda r: stamp() + [salu("s_sub_u32", sRound, sRound, 1), scmp("s_cmp_eq_u32", sRound, 0), branch("s_cbranch_scc1", f"L_tail{r}")]
    exA, exB, bA, bB, hA, hB, tA, tB = ex("A"), ex("B"), boundary("A"), boundary("B"), head0("A") + stamp(), head0("B") + stamp(), tail("A"), tail("B")
    fin = stamp() + ([wait(vm=0)] + stamp() if OPT["stamps"] else []) + dbg_end() + \
        [scmp("s_cmp_eq_u32", sFlag, 0), branch("s_cbranch_scc1", "L_end")]
    sl = slow()
    prog = pro + sel
    prog += [label("L_exitB")] + exB + bB + [label("L_headA")] + hA + both(FA)
    prog += [label("L_pa1")] + both(PA[1]) + both(PA[2]) + both(PA[3]) + both(PA[0]) + jump("L_pa1")
    prog += [label("L_exitA")] + exA + bA + [label("L_headB")] + hB + enter_b() + both(FB[0])
    prog += [label("L_pb1")] + both(PB[1]) + [label("L_pb2")] + both(PB[2]) + [label("L_pb3")] + both(PB[3]) + [label("L_pb0")] + both(PB[0]) + jump("L_pb1")
    for w in (1, 2, 3): prog += [label(f"L_fb{w}")] + both(FB[w]) + jump(f"L_pb{(w + 1) % 4}")
    prog += [label("L_tailB")] + tB + jump("L_fin") + [label("L_tailA")] + tA + [label("L_fin")] + fin + sl + [label("L_end"), raw("s_endpgm")]
    prog, far = expand(prog, "emit")
    k = next(i for i, x in enumerate(prog) if x.text == "L_exitB:")
    prog = prog[:k] + far + prog[k:]
    errs = check(sl, "slow")
    for w in range(4):
        ra = hA + both(FA) + flat(both(PA[j % 4]) for j in range(1, 15)) + PA[3][0] + exA
        rb = hB + enter_b() + both(FB[w]) + flat(both(PB[(w + j) % 4]) for j in range(1, 15)) + PB[(w + 15) % 4][0] + exB
        errs += check(pro + sel + expand(ra, "on") + expand(bA + rb + bB + ra + bA + rb + tB + fin, "off"), f"AB w{w}")
        errs += check(pro + sel + expand(rb, "on") + expand(bB + ra + bA + rb + bB + ra + tA + fin, "off"), f"BA w{w}")
    errs = list(dict.fromkeys(errs))
    for e in errs[:40]: print("CHECK:", e, file=sys.stderr)
    return prog, errs

HEADER = """; Attention forward, B=16 H=32 Sq=848 Sk=512 D=128, bf16 (written by the generator gen/gen.py).
; One workgroup per CU, four heads per pair of workgroups. Per head one workgroup takes rows 0..447 (round A: 7 x 16 rows
; S^T = K Q^T and O^T = V^T P^T with 16x16x32 MFMA; K/V stream through an LDS ring, Q/O through per-wave LDS staging.
; exp2 runs without max subtraction; every row sum is range-checked and rows outside [2^-24, 2^40] are recomputed
; @launch grid=(256,1,1) block=(256,1,1) lds=%d
.amdgcn_target "amdgcn-amd-amdhsa--gfx950"
.text
.globl %s
.p2align 8
.type %s,@function
%s:
"""
FOOTER = """.section .rodata,"a"
.p2align 6
.amdhsa_kernel %s
  .amdhsa_next_free_vgpr 512
  .amdhsa_next_free_sgpr 96
  .amdhsa_accum_offset 256
  .amdhsa_group_segment_fixed_size 0
  .amdhsa_kernarg_size 48
  .amdhsa_user_sgpr_count 2
  .amdhsa_user_sgpr_kernarg_segment_ptr 1
  .amdhsa_system_sgpr_workgroup_id_x 1
  .amdhsa_float_denorm_mode_32 3
.end_amdhsa_kernel
"""

def emit(path):
    prog, errs = build()
    with open(path, "w") as f:
        f.write(HEADER % (LDS, KNAME, KNAME, KNAME))
        for x in prog:
            if x.text: f.write(("" if x.text.endswith(":") else "    ") + x.text + "\n")
        f.write(FOOTER % KNAME)
    return errs

if __name__ == "__main__":
    out = sys.argv[1]
    for kv in sys.argv[2:]:
        k, val = kv.split("=")
        OPT[k] = val.replace("+", " ")
    sys.exit(1 if emit(out) else 0)
```

```python
import sys, struct, math
from asmlib import *

KNAME = "standalone__gqa_softmax__near_ridge_kernel"
OPT = dict(kv="nt", q="nt", o="nt", stamps=False)

HEAD_Q = 848 * 256
HEAD_KV = 512 * 256
QBYTES = 512 * HEAD_Q
PITCH = 1056
BLK = 8 * PITCH
SLOT = 2 * BLK
STG0 = 3 * SLOT
STGW = 6 * 4096
LSUM = STG0 + 4 * STGW
LDS = LSUM + 1024
ORDER7 = [0, 1, 2, 6, 3, 4, 5]
ORDER6 = [0, 1, 2, 3, 4, 5]

vS, vT, vP = 192, 200, 208
vK, vV, vKb, vVb, vSt, vLin, vSw0, vSw1, vQa, vOw, vFr, vStb = range(212, 224)
vTMP = 224
vQx = 232
vOx = 235
vRc = 242
vMx, vMn, vQ6 = 250, 251, 255
aQ, aQ6n, aK, aV, aL, aONE, aO6 = 0, 112, 128, 160, 192, 220, 224
SK, SV, SQ, SO = "s[4:7]", "s[8:11]", "s[12:15]", "s[16:19]"
(sW, sC, sRd, sTop, sW2112, sKV, sQ, sO, sSM, sCnt, sRound, sCur0, sCur6, sNx0, sNx6,
 sE0, sE6, sF0, sF6, sHead, sFlag, sStg, sT0, sT1, sT2, sLo, sSpan, sPair, sRole, sI, sJ) = [f"s{i}" for i in range(28, 59)]

def v(i, n=1): return R("v", i, n)
def a(i, n=1): return R("a", i, n)
def Oreg(t, j): return a(aO6 + 4 * j, 4) if t == 6 else v(32 * t + 4 * j, 4)
def fbits(x): return struct.unpack("<I", struct.pack("<f", x))[0]
L_LO, L_HI = fbits(2.0 ** -24), fbits(2.0 ** 40)

def qk(t, i):
    hb, ks = i >> 2, i & 3
    d = v(vS + 4 * hb, 4)
    return mfma(d, a(aK + 4 * i, 4), a(aQ + 16 * t + 4 * ks, 4), 0 if ks == 0 else d)
def pv(t, j, first):
    d = Oreg(t, j)
    return mfma(d, a(aV + 4 * j, 4), v(vP, 4), 0 if first else d)
def summ(t, first):
    d = a(aL + 4 * t, 4)
    return mfma(d, a(aONE, 4), v(vP, 4), 0 if first else d)

def softmax_groups():
    m = lambda i: valu("v_mul_f32", v(vT + i), sC, v(vS + i))
    e = lambda i: valu("v_exp_f32", v(vT + i), v(vT + i))
    c = lambda i: valu("v_cvt_pk_bf16_f32", v(vP + i), v(vT + 2 * i), v(vT + 2 * i + 1))
    return [[m(0), m(1)], [e(0)], [e(1)], [m(2), m(3)], [e(2)], [m(4), m(5)], [e(3)], [m(6), m(7)],
            [e(4)], [e(5)], [c(0), c(1)], [e(6)], [e(7)], [c(2), c(3)]]
HEAD0, HEADL = 8, 7

def kread(i): return dsread("ds_read_b128", a(aK + 4 * i, 4), v(vK), (i >> 2) * 512 + (i & 3) * 64)
def vread(j): return [dsread("ds_read_b64_tr_b16", a(aV + 4 * j + 2 * hb, 2), v(vV), BLK + hb * 512 + j * 32) for hb in (0, 1)]

def gap_cost(ins):
    t = 4; prev = "mfma"
    for x in ins:
        k = x.kind
        if k in ("label", "need", "reset"): continue
        if k in VAL:
            if prev == "ds": t += 4
            t = max(t, 8) + (8 if k == "trans" else 4); prev = "valu"
        elif k == "dsr":
            if prev == "valu": t += 4
            t += 4; prev = "ds"
        else:
            if prev == "ds": t += 4
            t += {"dma": 12, "vst": 24, "barrier": 13, "branch": 8}.get(k, 4); prev = k
    if prev == "ds": t += 4
    return max(16, t)

class Stub(I):
    __slots__ = ("code", "skip", "name")
    n = 0
    def __init__(self, code, skip=()):
        Stub.n += 1
        self.name = f"L_stub{Stub.n}"; self.code = code; self.skip = list(skip)
        I.__init__(self, f"s_cbranch_vccnz {self.name}", "branch")
def expand(seq, mode):
    out = []; far = []
    for x in seq:
        if not isinstance(x, Stub): out.append(x); continue
        br = I(x.text, "branch")
        if mode == "emit":
            out += [br] + x.skip + [label(x.name + "r")]
            far += [label(x.name)] + x.code + [branch("s_branch", x.name + "r")]
        elif mode == "on": out += [br] + x.code + [I("s_branch", "branch")]
        else: out += [br] + x.skip
    return (out, far) if mode == "emit" else out

def step(order, first, plan, vmN, exit_label=None, zero6=True):
    n = len(order); NG = 17 * n
    at = lambda k, g: 17 * ((k - 1) % n) + g
    kvf, qf, of = OPT["kv"], OPT["q"], OPT["o"]
    job = "st0" in plan
    ops = {
        "bar": [wait(vm=vmN), need("kv", "step"), barrier()],
        "d0": [dma(v(vLin), SK, sKV, 0, kvf, "kv")], "d1": [dma(v(vLin), SK, sKV, 1024, kvf, "kv")],
        "d2": [dma(v(vLin), SV, sKV, 0, kvf, "kv")], "d3": [dma(v(vLin), SV, sKV, 1024, kvf, "kv")],
        "jr": [dsread("ds_read_b128", v(vTMP, 4), v(vSt), 0), dsread("ds_read_b128", v(vTMP + 4, 4), v(vSt), 1024)],
        "st0": [bstore(v(vTMP, 4), v(vSw0), SO, sO, 0, of)], "st1": [bstore(v(vTMP + 4, 4), v(vSw1), SO, sO, 1024, of)],
        "q0": [dma(v(vSw0), SQ, sQ, 0, qf, "q")], "q1": [dma(v(vSw1), SQ, sQ, 1024, qf, "q")],
        "upk": [valu("v_add_u32", v(vK), sRd, v(vKb))], "upv": [valu("v_add_u32", v(vV), sRd, v(vVb))],
        "ups": [valu("v_add_u32", v(vSt), 2048, v(vSt))],
        "last": [branch("s_cbranch_scc1", exit_label)] if exit_label else [],
    }
    for j in range(8): ops[f"v{j}"] = vread(j); ops[f"k{j}"] = [kread(j)]
    body = [[] for _ in range(NG)]; pre = [[] for _ in range(NG)]
    free = set(); extra = []; idx = {}
    for name, pos in plan.items():
        i = at(pos[0], pos[1]); idx[name] = i
        if len(pos) > 2: extra.append((i, ops[name]))
        else: free.add(i); body[i] += ops.get(name, [])
    for k in range(n):
        gaps = [at(k, g) for g in range(7, 17)] + [at(k + 1, g) for g in range(7)]
        nf = [sum(i in free for i in gaps[:10]), sum(i in free for i in gaps[10:])]
        assert sum(nf) == 3, (k, nf)
        if k == 0: assert 10 - nf[0] == HEAD0
        if k == n - 1: assert 10 - nf[0] == HEADL
        gs = softmax_groups()
        for i in gaps:
            if i not in free: body[i] += gs.pop(0)
    for i, ins in extra: body[i] += ins
    ms = [None] * NG
    for k in range(n):
        t, tp = order[k], order[k - 1]
        z = first and (tp != 6 or zero6)
        pvs = [pv(tp, j, z) for j in range(8)]
        seq = [qk(t, i) for i in range(8)] + ((pvs + [summ(tp, z)]) if k == 0 else ([summ(tp, z)] + pvs))
        for g in range(17): ms[at(k, g)] = seq[g]
    def can(i): return not pre[i] and (not body[i] or body[i][0].kind in VAL)
    def place(ins, lo, hi, latest=True):
        cand = [i for i in range(lo, hi) if can(i)]
        assert cand, (ins.text, lo, hi)
        i = cand[-1] if latest else cand[0]
        pre[i].append(ins); return i
    pend = [(-7, x) for j in range(4) for x in vread(j)]
    waits = []
    for i in range(NG):
        cons = [(ms[i], i)] + [(x, i) for x in body[i] if x.kind == "vst"]
        for y, _ in cons:
            hit = [p for p, (gi, x) in enumerate(pend) if x.wr & (y.rd | y.rdC)]
            if not hit: continue
            p = max(hit)
            cand = [h for h in range(max(pend[p][0] + 1, 0), i) if can(h)]
            assert cand, (y.text, i)
            h = cand[-1]
            while p + 1 < len(pend) and pend[p + 1][0] <= h - 6: p += 1
            pre[h].append(wait(lgkm=sum(1 for gi, x in pend[p + 1:] if gi < h)))
            pend = pend[p + 1:]
        pend += [(i, x) for x in body[i] if x.kind == "dsr"]
    m0 = {"d0": salu("s_mov_b32", "m0", sRd), "d1": salu("s_add_u32", "m0", sRd, 32),
          "d2": salu("s_add_u32", "m0", sRd, BLK), "d3": salu("s_add_u32", "m0", sRd, BLK + 32),
          "q0": salu("s_mov_b32", "m0", sSM), "q1": salu("s_mov_b32", "m0", sSM)}
    dm = sorted((idx[nm], nm) for nm in m0 if nm in idx)
    prev = (-1, None); m0pos = {}
    for i, nm in dm:
        if not (nm == "q1" and prev[1] == "q0"): m0pos[nm] = place(m0[nm], prev[0] + 1, i)
        prev = (i, nm)
    assert idx["bar"] < min(idx[d] for d in ("d0", "d1", "d2", "d3"))
    assert idx["bar"] > at(1, 14)
    lastd = max(idx[d] for d in ("d0", "d1", "d2", "d3"))
    up = min(idx["upk"], idx["upv"])
    cand = [i for i in range(max(m0pos[d] for d in ("d0", "d1", "d2", "d3")) + 1, up) if can(i)]
    pair = [(x, y) for x, y in zip(cand, cand[1:]) if all(not pre[z] or pre[z][0].kind == "wait" or pre[z][0].text.startswith("s_mov") for z in range(x, y))]
    x, y = pair[0]
    pre[x].append(salu("s_sub_u32", sRd, sRd, SLOT)); pre[y].append(salu("s_cselect_b32", sRd, sTop, sRd))
    lo = max(y, lastd) + 1
    hi = idx["last"]
    if exit_label: hi = place(salu("s_sub_u32", sCnt, sCnt, 1), lo, hi)
    place(salu("s_add_u32", sKV, sKV, 8192), lo, hi, False)
    if job:
        place(salu("s_add_u32", sO, sO, 2048), max(lo, idx["st1"] + 1), hi, False)
        place(salu("s_add_u32", sQ, sQ, 2048), max(lo, idx["q1"] + 1), hi, False)
        place(salu("s_add_u32", sSM, sSM, 2048), max(lo, idx["q1"] + 1), hi, False)
        assert idx["jr"] < idx["ups"] and idx["st0"] < idx["q0"] and idx["jr"] < idx["st0"]
    assert idx["upv"] > idx["v7"] and idx["upk"] < idx["k0"]
    if first:
        todo = [f"Q{t_}" for t_ in order[3:]] + ["KV2"] + ([] if n == 7 else ["Q6"])
        hist = list(PRO)
        sites = []
        for k in range(1, n - 1):
            i = at(k, 12)
            while not can(i) or x < i <= y: i -= 1
            sites.append((i, order[k + 1]))
        i = NG - 1
        while not can(i): i -= 1
        sites += [(i, None), (idx["bar"], "bar")]
        done = 0
        for i, t_ in sorted(sites, key=lambda z: z[0]):
            hist += ["x" for h in range(done, i) for z in body[h] if z.kind in ("dma", "vst")]; done = i
            after = lambda nm: sum(1 if z == "x" else 4 for z in hist[hist.index(nm) + 1:])
            if t_ == "bar":
                body[i][0] = Stub([wait(vm=after("KV1"))], [body[i][0]]); continue
            code = []
            while todo and (t_ is None or f"Q{t_}" not in hist or sum(z != "x" for z in hist[hist.index(f"Q{t_}") + 1:]) < int(OPT.get("ahead", 2))):
                hist.append(todo[0]); code += pro_load(todo.pop(0))
            last = [z for z in hist if z != "x"][-1]
            if t_ is None and OPT.get("defer", "1") == "1":
                code += pro_load("KV3") + [salu("s_mov_b32", sKV, 4 * 8192)]; hist += ["x"] * 4
                if job:
                    code += [salu("s_mov_b32", "m0", sStg), salu("s_add_u32", sQ, sNx0, 2048),
                             dma(v(vSw0), SQ, sNx0, 0, qf, "qq"), dma(v(vSw1), SQ, sNx0, 1024, qf, "qq")] + ops["st0"] + ops["st1"]; hist += ["x"] * 4
                else: code += [salu("s_mov_b32", sQ, sNx0)]
            if code: code = [salu("s_mov_b32", sT2, "m0")] + code + [salu("s_mov_b32", "m0", sT2)]
            code.append(wait(vm=after(last if t_ is None else f"Q{t_}")))
            if t_ not in (None, 6): code += qreads(t_, tag="q0") + [wait(lgkm=0)]
            pre[i].append(Stub(code))
    out = []; t = 0; tb = None
    drop = OPT.get("drop", "").split()
    for i in range(NG):
        if i % 17 == 0:
            k = (i // 17 + 1) % n
            out.append(comment(f"slot {k}: QK subtile {order[k]}, PV subtile {order[k-1]}"))
        if i == 17 * (n - 1): cut = len(out) - 1
        if i == idx["bar"]: tb = t
        g = [x for x in pre[i] + body[i] if x.kind not in drop]
        out.append(ms[i]); out += g; t += gap_cost(g)
    return out[:cut], out[cut:], tb, t

PRO = ["KV0", "Q0", "Q1", "KV1", "Q2"]
def pro_load(x):
    n_ = int(x[-1]); o = []
    if x[0] == "K":
        for srd, off in ((SK, 0), (SV, BLK)):
            sl = (2 - n_) % 3 * SLOT + off
            tag = "kv" if n_ < 3 else "kv3"
            o += [salu("s_add_u32", "m0", sW2112, sl), salu("s_mov_b32", sT0, n_ * 8192), dma(v(vLin), srd, sT0, 0, OPT["kv"], tag),
                  salu("s_add_u32", "m0", sW2112, sl + 32), nop(0), dma(v(vLin), srd, sT0, 1024, OPT["kv"], tag)]
        return o
    if n_ == 6: return q6loads(sCur6)
    return [salu("s_add_u32", "m0", sStg, 4096 * n_), salu("s_add_u32", sT0, sCur0, 4096 * n_)] + \
           [dma(v(vSw1 if n & 1 else vSw0), SQ, sT0, 1024 * n, OPT["q"], "q0") for n in range(4)]

def vk_sites(n, v67=(7, 7)):
    L = n - 1
    return {"v0": (0, 10), "v1": (0, 10), "v2": (0, 14), "v3": (0, 14), "v4": (1, 1), "v5": (1, 1), "v6": (1, v67[0]), "v7": (1, v67[1]),
            "k0": (L, 1), "k1": (L, 1), "k2": (L, 5), "k3": (L, 5), "k4": (L, 8), "k5": (L, 8), "k6": (L, 11), "k7": (L, 11), "last": (L, 16)}

def plan_a(job):
    p = vk_sites(7)
    p.update({"bar": (2, 0), "d0": (2, 4), "d1": (2, 9), "d2": (2, 14), "d3": (3, 2), "upk": (3, 13), "upv": (3, 13)})
    if job: p.update({"jr": (3, 9), "st0": (4, 3), "st1": (4, 9), "q0": (4, 14), "q1": (5, 2), "ups": (5, 10)})
    else: p.update({"e0": (3, 9), "e1": (4, 3), "e2": (4, 9), "e3": (4, 14), "e4": (5, 2), "e5": (5, 10)})
    return p

def plan_b(p_):
    if p_ == 0:
        p = vk_sites(7, (7, 9))
        p.update({"e0": (2, 3), "bar": (2, 10), "d0": (2, 14), "d1": (3, 2), "d2": (3, 9), "d3": (3, 14), "e1": (4, 3),
                  "upk": (4, 9), "upv": (4, 9), "e2": (4, 14), "e3": (5, 2), "e4": (5, 10)})
        return p
    p = vk_sites(6)
    p["jr"] = (1, 7)
    if p_ == 1: p.update({"bar": (1, 15), "d0": (2, 3), "d1": (2, 8), "d2": (2, 13), "d3": (3, 1), "st0": (3, 8), "st1": (3, 13), "q0": (4, 1), "q1": (4, 9)})
    if p_ == 2: p.update({"st0": (1, 15), "bar": (2, 1), "d0": (2, 8), "d1": (2, 13), "d2": (3, 1), "d3": (3, 8), "st1": (3, 13), "q0": (4, 1), "q1": (4, 9)})
    if p_ == 3: p.update({"st0": (1, 15), "bar": (2, 5), "d0": (2, 9), "d1": (2, 13), "d2": (3, 1), "d3": (3, 8), "st1": (3, 13), "q0": (4, 1), "q1": (4, 9)})
    p.update({"upk": (4, 12, "x"), "upv": (4, 14, "x"), "ups": (4, 16, "x")})
    return p

def stamp():
    if not OPT["stamps"]: return []
    return [raw("s_memtime s[60:61]", "smem", (), regs("s[60:61]")), raw("s_memrealtime s[62:63]", "smem", (), regs("s[62:63]")),
            wait(lgkm=0), valu("v_mov_b32", "v252", "s60"), valu("v_mov_b32", "v253", "s62"), valu("v_mov_b32", "v254", 0),
            raw("s_mov_b64 exec, 1", "salu"),
            bstore("v[252:253]", "v254", "s[64:67]", "s68", op="buffer_store_dwordx2"),
            raw("s_mov_b64 exec, -1", "salu"), salu("s_add_u32", "s68", "s68", 8), nop(3)]
def stamp_init():
    if not OPT["stamps"]: return []
    return [raw("s_load_dwordx2 s[64:65], s[0:1], 40", "smem", (), regs("s[64:65]")), wait(lgkm=0),
            salu("s_mov_b32", "s66", 1 << 20), salu("s_mov_b32", "s67", "0x20000"),
            salu("s_lshl_b32", "s68", "s2", 2), salu("s_add_u32", "s68", "s68", sW), salu("s_lshl_b32", "s68", "s68", 8)] + stamp()
def dbg_begin():
    if not OPT.get("dbg"): return []
    return [raw("s_memtime s[70:71]", "smem", (), regs("s[70:71]")), raw("s_memrealtime s[72:73]", "smem", (), regs("s[72:73]")),
            raw("s_load_dwordx2 s[76:77], s[0:1], 32", "smem", (), regs("s[76:77]")), wait(lgkm=0),
            salu("s_mov_b32", "s78", 64), salu("s_mov_b32", "s79", "0x20000")] + ([
            salu("s_mov_b32", "s80", "s76"), salu("s_mov_b32", "s81", "s77"), salu("s_mov_b32", "s82", 256), salu("s_mov_b32", "s83", "0x20000"),
            salu("s_not_b32", "s61", "s72"), valu("v_mov_b32", "v252", "s61"), valu("v_mov_b32", "v254", 128), raw("s_mov_b64 exec, 1", "salu"),
            raw("buffer_atomic_umax v252, v254, s[80:83], 0 offen sc1"), raw("s_mov_b64 exec, -1", "salu")] if OPT.get("probe") == "abs" else [])
def dbg_end():
    if not OPT.get("dbg"): return []
    return [wait(vm=0), raw("s_memtime s[60:61]", "smem", (), regs("s[60:61]")), raw("s_memrealtime s[62:63]", "smem", (), regs("s[62:63]")),
            wait(lgkm=0), salu("s_sub_u32", "s60", "s60", "s70"), salu("s_sub_u32", "s62", "s62", "s72"),
            salu("s_lshl_b32", "s61", sW, 8), salu("s_add_u32", "s61", "s61", "s2"), salu("s_lshl_b32", "s61", "s61", 3),
            valu("v_mov_b32", "v252", "s60"), valu("v_mov_b32", "v253", "s62"), valu("v_mov_b32", "v254", "s61"),
            raw("s_mov_b64 exec, 1", "salu"),
            bstore("v[252:253]", "v254", "s[76:79]", 0, op="buffer_store_dwordx2"), raw("s_mov_b64 exec, -1", "salu")] + probe()
def probe():
    m = OPT.get("probe")
    if not m: return []
    tgt = {"fix": [salu("s_mov_b32", "s61", 15000)],
           "cyc": [salu("s_mul_hi_u32", "s61", "s60", "0x1999999a")],
           "dbl": [salu("s_lshl_b32", "s61", "s62", 1)],
           "abs": [valu("v_mov_b32", "v254", 128), valu("v_mov_b32", "v252", 0), raw("buffer_load_dword v252, v254, s[80:83], 0 offen sc0 sc1"), wait(vm=0),
                   valu("v_readfirstlane_b32", "s72", "v252"), nop(3), salu("s_not_b32", "s72", "s72"), salu("s_mov_b32", "s61", 15000)]}[m]
    return tgt + [label("L_probe"), raw("s_memrealtime s[62:63]", "smem", (), regs("s[62:63]")), wait(lgkm=0),
                  salu("s_sub_u32", "s62", "s62", "s72"), scmp("s_cmp_lt_u32", "s62", "s61"), branch("s_cbranch_scc1", "L_probe")]

def flat(gs): return [x for g in gs for x in g]
def spaced(seq):
    out = []
    for x in seq:
        if out and out[-1].kind == "trans" and x.kind == "valu" and out[-1].wr & x.rd: out.append(nop(0))
        out.append(x)
    return out
def weave(ms, fill, pres=()):
    out = []; fill = list(fill); pres = list(pres)
    for m_ in ms:
        out.append(m_)
        g = fill.pop(0) if fill else []
        if pres and (not g or g[0].kind in VAL): out.append(pres.pop(0))
        out += g
    return out + flat(fill) + pres
def pairs(seq): return [seq[i:i + 2] for i in range(0, len(seq), 2)]

def qaddr(ks): return v(vQa) if ks == 0 else v(vQx + ks - 1)
def oaddr(j): return v(vOw) if j == 0 else v(vOx + j - 1)
def qreads(t, slot=None, tag="q"):
    slot = t if slot is None else slot
    return ([need(tag, 4 * t + 4)] if t < 6 else []) + \
        [dsread("ds_read_b128", a(aQ + 16 * t + 4 * ks, 4), qaddr(ks), 4096 * slot) for ks in range(4)]
def q6bounce(slot): return [dswrite("ds_write_b128", v(vStb), a(aQ6n + 4 * n, 4), 4096 * slot + 1024 * n) for n in range(4)]
def q6loads(soff): return [bload(a(aQ + 96 + 4 * ks, 4), v(vQ6), SQ, soff, 64 * ks, OPT["q"]) for ks in range(4)]
def readback(slot, dst): return [dsread("ds_read_b128", v(dst + 4 * n, 4), v(vStb), 4096 * slot + 1024 * n) for n in range(4)]
def stores(src, soff): return [bstore(v(src + 4 * n, 4), v(vSw1 if n & 1 else vSw0), SO, soff, 1024 * n, OPT["o"]) for n in range(4)]

def flag(mask):
    return [salu("s_lshl_b32", sFlag, sFlag, 1), scmp("s_cmp_lg_u64", mask, 0), salu("s_addc_u32", sFlag, sFlag, 0)]
def l_own():
    r = lambda t: v(vRc + t)
    g = pairs([valu("v_accvgpr_read_b32", r(t), a(aL + 4 * t)) for t in range(6)])
    g += [[valu("v_max3_u32", v(vMx), r(0), r(1), r(2)), valu("v_min3_u32", v(vMn), r(0), r(1), r(2))],
          [valu("v_max3_u32", v(vMx), v(vMx), r(3), r(4)), valu("v_min3_u32", v(vMn), v(vMn), r(3), r(4))],
          [valu("v_max_u32", v(vMx), v(vMx), r(5)), valu("v_min_u32", v(vMn), v(vMn), r(5))],
          [valu("v_subrev_u32", v(vMx), sLo, v(vMx)), valu("v_subrev_u32", v(vMn), sLo, v(vMn))],
          [valu("v_max_u32", v(vMx), v(vMx), v(vMn)), valu("v_cmp_lt_u32", "vcc", sSpan, v(vMx))]]
    g += [[valu("v_rcp_f32", r(t), r(t))] for t in range(6)]
    return g, flag("vcc")
def l_six():
    r = v(vRc + 6)
    return [valu("v_subrev_u32", v(vMx), sLo, r), valu("v_cmp_lt_u32", "vcc", sSpan, v(vMx)), valu("v_rcp_f32", r, r), nop(1)] + flag("vcc")

def scale_pack(t, base, nblk):
    rp = v(vRc + (t & ~1), 2)
    mods = "op_sel_hi:[1,0]" if t % 2 == 0 else "op_sel:[0,1] op_sel_hi:[1,1]"
    o = [valu("v_pk_mul_f32", v(base + 2 * i, 2), v(base + 2 * i, 2), rp, mods=mods) for i in range(2 * nblk)]
    for b in range(nblk):
        o += [valu("v_cvt_pk_bf16_f32", v(base + 4 * b + i), v(base + 4 * b + 2 * i), v(base + 4 * b + 2 * i + 1)) for i in range(2)]
    return o
def epi(t, slot, tmp=None, side=()):
    o = []; side = list(side)
    for j0 in range(0, 8, 2):
        if t == 6:
            base = tmp + 4 * j0
            o += [valu("v_accvgpr_read_b32", v(base + i), a(aO6 + 4 * j0 + i)) for i in range(8)]
        else:
            base = 32 * t + 4 * j0
        o += scale_pack(t, base, 2)
        o += [dswrite("ds_write_b64", oaddr(j0 + b), v(base + 4 * b, 2), 4096 * slot) for b in range(2)]
        if side: o += side.pop(0)
    return o

def red_put():
    w = [dswrite("ds_write_b128", v(vStb), a(aO6 + 4 * j, 4), 1024 * j) for j in range(8)]
    pre_ = [valu("v_lshrrev_b32", v(vMn), 2, v(vLin)), valu("v_and_b32", v(vMx), 255, v(vMn)), valu("v_lshrrev_b32", v(vMn), 9, v(vMn)),
            valu("v_lshl_add_u32", v(vMn), v(vMn), 8, v(vMx)), valu("v_add_u32", v(vMn), LSUM, v(vMn)), valu("v_add_u32", v(vMx), LSUM, v(vMx)),
            dswrite("ds_write_b32", v(vMn), a(aL + 24), 0)]
    return pre_, pairs(w)
def red_get(tmp):
    o = [valu("v_add_u32", v(vMn), STG0, v(vLin)), valu("v_add_u32", v(vTMP + 4), STG0 + 2 * STGW, v(vLin))]
    for w in range(4):
        ad = v(vMn) if w < 2 else v(vTMP + 4)
        o += [dsread("ds_read_b128", v(tmp + 8 * w + 4 * b, 4), ad, (w & 1) * STGW + 1024 * b) for b in range(2)]
    o += [dsread("ds_read_b32", v(vTMP + w), v(vMx), 256 * w) for w in range(4)]
    return o
def red_fin(tmp, soff):
    o = [valu("v_add_f32", v(vTMP), v(vTMP), v(vTMP + 1)), valu("v_add_f32", v(vTMP + 2), v(vTMP + 2), v(vTMP + 3)),
         valu("v_add_f32", v(vRc + 6), v(vTMP), v(vTMP + 2))]
    o += l_six()
    for x, y in ((0, 1), (2, 3), (0, 2)):
        o += [valu("v_pk_add_f32", v(tmp + 8 * x + 2 * i, 2), v(tmp + 8 * x + 2 * i, 2), v(tmp + 8 * y + 2 * i, 2)) for i in range(4)]
    o += scale_pack(6, tmp, 2)
    o += [salu("s_lshl_b32", sT2, sW, 6), salu("s_add_u32", sT2, sT2, soff)]
    o += [bstore(v(tmp + 4 * b, 2), v(vFr), SO, sT2, 32 * b, OPT["o"], op="buffer_store_dwordx2") for b in range(2)]
    return o

def next_bases():
    return [salu("s_add_u32", sHead, sHead, HEAD_Q),
            salu("s_add_u32", sNx0, sHead, sE0), salu("s_add_u32", sNx6, sHead, sE6),
            salu("s_mov_b32", sT0, sE0), salu("s_mov_b32", sE0, sF0), salu("s_mov_b32", sF0, sT0),
            salu("s_mov_b32", sT0, sE6), salu("s_mov_b32", sE6, sF6), salu("s_mov_b32", sF6, sT0)]

def head0(role):
    g = softmax_groups()[:HEAD0]
    if role == "A": return spaced(flat(g)) + [salu("s_mov_b32", sCnt, 3), wait(lgkm=0)]
    z = v(vTMP + 4, 4)
    zs = [mfma(a(aO6 + 4 * j, 4), z, z, 0) for j in range(8)] + [mfma(a(aL + 24, 4), z, z, 0)]
    return [valu("v_mov_b32", v(vTMP + 4 + i), 0) for i in range(4)] + g[0] + weave(zs, g[1:], [salu("s_mov_b32", sCnt, 14)]) + [wait(lgkm=0)]
def enter_b():
    o = []
    for w in (1, 2, 3): o += [scmp("s_cmp_eq_u32", sW, w), branch("s_cbranch_scc1", f"L_fb{w}")]
    return o

def boundary(prev):
    ql = q6loads(sNx6)
    o = [wait(vm=8)] + [ql[0]] + qreads(0) + spaced(flat(softmax_groups()[HEADL:]))
    sal = [salu("s_mov_b32", "s18", QBYTES), salu("s_mov_b32", sO, sCur0), salu("s_mov_b32", sT1, sCur6),
           salu("s_mov_b32", sCur0, sNx0), salu("s_mov_b32", sCur6, sNx6)] + next_bases() + \
          [salu("s_mov_b32", sQ, sNx0), salu("s_mov_b32", sSM, sStg)]
    q1, q2 = qreads(1), qreads(2)
    o += [nop(1)] + weave([summ(5, False)] + [pv(5, j, False) for j in range(8)],
                          [q1[:3]] + [vread(j) for j in range(4)] + [q1[3:], q2[:3], q2[3:], [ql[1]]])
    o.append(wait(lgkm=14))
    ql = q6loads(sCur6)
    lg, fl = l_own()
    o += weave([qk(0, i) for i in range(8)], lg[:8], sal[:8])
    for g, s_ in zip(lg[8:], sal[8:14]): o += g + [s_]
    o += sal[14:] + fl + [valu("v_mov_b32", v(vSt), v(vStb)), ql[2]]
    dis = [scmp("s_cmp_eq_u32", sRound, 1), salu("s_cselect_b32", "s14", 0, "s14")]
    if prev == "A":
        o += [valu("v_accvgpr_read_b32", v(vRc + 6), a(aL + 24))] + l_six()
        o += epi(1, 1) + [ql[3]] + dis
        o += epi(6, 0, tmp=32) + readback(0, 32) + qreads(3)
        o += epi(2, 2)
        o += [wait(lgkm=8)] + epi(0, 0, side=[[x] for x in stores(32, sT1)]) + qreads(4)
        o += epi(3, 3) + [wait(vm=8)] + qreads(5) + epi(4, 4) + epi(5, 5)
    else:
        p0, pw = red_put()
        o += p0 + epi(2, 2, side=pw) + [ql[3]] + dis + qreads(3) + [wait(lgkm=4), barrier()] + red_get(64)
        o += epi(3, 3) + qreads(4) + [wait(lgkm=12), barrier()]
        o += red_fin(64, sT1)
        o += epi(0, 0) + epi(1, 1) + [wait(vm=6)] + qreads(5) + epi(4, 4) + epi(5, 5)
    o += [reset("q"), salu("s_mov_b64", "vcc", 0)]
    return o

def tail(prev):
    keep = OPT["o"]; OPT["o"] = OPT.get("ot", keep)
    o = tail_(prev); OPT["o"] = keep
    return o
def tail_(prev):
    o = spaced(flat(softmax_groups()[HEADL:])) + [salu("s_mov_b32", "s18", QBYTES), wait(vm=0)]
    lg, fl = l_own()
    o += [summ(5, False)] + [pv(5, j, False) for j in range(8)] + spaced(flat(lg)) + fl
    def st(t): return [[salu("s_add_u32", sT1, sCur0, 4096 * t)] + stores(32 * t, sT1)[:1]] + [[x] for x in stores(32 * t, sT1)[1:]]
    if prev == "A":
        o += [valu("v_accvgpr_read_b32", v(vRc + 6), a(aL + 24))] + l_six()
        o += epi(1, 1) + readback(1, 32) + epi(0, 0) + readback(0, 0)
        seq = [1, 0, 2, 3, 4, 5]
        for i in range(2, 6): o += [wait(lgkm=12)] + epi(seq[i], seq[i], side=st(seq[i - 2])) + readback(seq[i], 32 * seq[i])
        o += [wait(lgkm=12)] + epi(6, 0, tmp=32, side=st(4)) + readback(0, 32)
        o += [wait(lgkm=12)] + flat(st(5)) + [wait(lgkm=0)] + stores(32, sCur6)
    else:
        p0, pw = red_put()
        o += p0 + epi(2, 2, side=pw) + readback(2, 64) + [wait(lgkm=4), barrier()]
        o += epi(3, 3) + readback(3, 96) + [wait(lgkm=12)] + epi(4, 4, side=st(2)) + red_get(64) + [wait(lgkm=12)]
        o += flat(st(3)) + readback(4, 128) + [wait(lgkm=4), barrier()]
        o += red_fin(64, sCur6)
        o += [wait(lgkm=0)] + epi(5, 5, side=st(4)) + readback(5, 160) + epi(0, 0) + readback(0, 0)
        o += [wait(lgkm=12)] + epi(1, 1, side=st(5)) + readback(1, 32) + [wait(lgkm=12)] + flat(st(0)) + [wait(lgkm=0)] + flat(st(1))
    return o

def role_bases():
    return [salu("s_mul_i32", sE0, sW, 7 * 4096), salu("s_add_u32", sE6, sE0, 6 * 4096),
            salu("s_mul_i32", sF0, sW, 6 * 4096), salu("s_add_u32", sF0, sF0, 448 * 256), salu("s_mov_b32", sF6, 832 * 256),
            scmp("s_cmp_eq_u32", sRole, 0),
            salu("s_cselect_b32", sT0, sE0, sF0), salu("s_cselect_b32", sF0, sF0, sE0), salu("s_mov_b32", sE0, sT0),
            salu("s_cselect_b32", sT0, sE6, sF6), salu("s_cselect_b32", sF6, sF6, sE6), salu("s_mov_b32", sE6, sT0),
            salu("s_mul_i32", sHead, sPair, 4 * HEAD_Q), salu("s_sub_u32", sHead, sHead, HEAD_Q)]

def prologue():
    c = math.log2(math.e) / math.sqrt(128.0)
    L, G, Rw, X, Y, Z = (vTMP + i for i in range(6))
    o = [scmp("s_cmp_ge_u32", "s2", 256), branch("s_cbranch_scc1", "L_end")] + dbg_begin()
    o += [raw("s_load_dwordx4 s[20:23], s[0:1], 0", "smem", (), regs("s[20:23]")),
          raw("s_load_dwordx4 s[24:27], s[0:1], 16", "smem", (), regs("s[24:27]")),
          valu("v_lshrrev_b32", v(X), 6, "v0"), valu("v_and_b32", v(L), 63, "v0"),
          valu("v_readfirstlane_b32", sW, v(X)),
          valu("v_lshrrev_b32", v(G), 4, v(L)), valu("v_and_b32", v(Rw), 15, v(L)),
          salu("s_lshr_b32", sT0, "s2", 4), salu("s_lshl_b32", sT0, sT0, 3), salu("s_and_b32", sT1, "s2", 7),
          salu("s_add_u32", sPair, sT0, sT1), salu("s_bfe_u32", sRole, "s2", "0x10003")]
    if OPT.get("adj"): o += [salu("s_lshr_b32", sPair, "s2", 1), salu("s_and_b32", sRole, "s2", 1)]
    o += [
          salu("s_mul_i32", sW2112, sW, 2 * PITCH), salu("s_add_u32", sTop, sW2112, 2 * SLOT),
          salu("s_mul_i32", sStg, sW, STGW), salu("s_add_u32", sStg, sStg, STG0)]
    o += role_bases()
    o += next_bases() + [salu("s_mov_b32", sCur0, sNx0), salu("s_mov_b32", sCur6, sNx6)] + next_bases()
    o += [comment("vLin = lane*16 + wave*2048, vStb = lane*16 + staging base"),
          valu("v_lshlrev_b32", v(Y), 4, v(L)), valu("v_add_u32", v(vStb), sStg, v(Y)),
          valu("v_lshl_add_u32", v(vLin), v(X), 11, v(Y)),
          comment("vSw0/1 = g*256 + ((lane&15) ^ s(rho))*16, rho = g (+4), s(rho) = rho | (rho&1)<<3"),
          valu("v_and_b32", v(Y), 1, v(G)), valu("v_lshl_add_u32", v(Y), v(Y), 3, v(G)),
          valu("v_xor_b32", v(Y), v(Y), v(Rw)), valu("v_lshlrev_b32", v(Y), 4, v(Y)),
          valu("v_lshl_add_u32", v(vSw0), v(G), 8, v(Y)), valu("v_xor_b32", v(vSw1), 64, v(vSw0)),
          valu("v_lshlrev_b32", v(Y), 4, v(G)), valu("v_lshl_add_u32", v(vQ6), v(Rw), 8, v(Y))]
    o += [wait(lgkm=0),
          salu("s_lshl_b32", sT0, sPair, 19),
          salu("s_add_u32", "s4", "s22", sT0), salu("s_addc_u32", "s5", "s23", 0), salu("s_mov_b32", "s6", 4 * HEAD_KV), salu("s_mov_b32", "s7", "0x20000"),
          salu("s_add_u32", "s8", "s24", sT0), salu("s_addc_u32", "s9", "s25", 0), salu("s_mov_b32", "s10", 4 * HEAD_KV), salu("s_mov_b32", "s11", "0x20000"),
          salu("s_mov_b32", "s12", "s20"), salu("s_mov_b32", "s13", "s21"), salu("s_mov_b32", "s14", QBYTES), salu("s_mov_b32", "s15", "0x20000"),
          salu("s_mov_b32", "s16", "s26"), salu("s_mov_b32", "s17", "s27"), salu("s_mov_b32", "s18", 0), salu("s_mov_b32", "s19", "0x20000")]
    o += stamp_init()
    o += pro_load(PRO[0])
    for i in range(int(OPT.get("stag", 0))):
        o += [scmp("s_cmp_eq_u32", sRole, 0), branch("s_cbranch_scc1", f"L_go{i}"), I("s_waitcnt vmcnt(0)", "other")]
        if i + 1 < int(OPT["stag"]): o += [I(x.text, "other") for x in pro_load(f"KV{i + 1}")]
        o += [label(f"L_go{i}")]
    for x in PRO[1:3]: o += pro_load(x)
    o += [comment("staging: Q fragment row*256 + (g ^ s)*16, O write row*256 + ((g>>1) ^ s)*16 + (g&1)*8; vFr = row*256 + g*8"),
          valu("v_and_b32", v(Y), 1, v(Rw)), valu("v_and_b32", v(Z), 7, v(Rw)), valu("v_lshl_add_u32", v(Y), v(Y), 3, v(Z)),
          valu("v_lshlrev_b32", v(Z), 8, v(Rw)), valu("v_lshl_add_u32", v(vFr), v(G), 3, v(Z)), valu("v_add_u32", v(Z), sStg, v(Z)),
          valu("v_xor_b32", v(X), v(Y), v(G)), valu("v_lshl_add_u32", v(vQa), v(X), 4, v(Z)),
          valu("v_lshrrev_b32", v(X), 1, v(G)), valu("v_xor_b32", v(X), v(Y), v(X)), valu("v_lshl_add_u32", v(vOw), v(X), 4, v(Z)),
          valu("v_and_b32", v(X), 1, v(G)), valu("v_lshl_add_u32", v(vOw), v(X), 3, v(vOw)),
          comment("ring: K piece row&7, line row>>3, chunk g; V piece (lane>>2)&7, line lane>>5, 8-byte chunk lane&3"),
          salu("s_mov_b32", sT0, PITCH),
          valu("v_and_b32", v(X), 7, v(Rw)), valu("v_mul_lo_u32", v(X), v(X), sT0),
          valu("v_lshrrev_b32", v(Y), 3, v(Rw)), valu("v_lshl_add_u32", v(X), v(Y), 8, v(X)),
          valu("v_lshl_add_u32", v(X), v(G), 4, v(X)), valu("v_subrev_u32", v(vKb), sW2112, v(X)),
          valu("v_bfe_u32", v(X), v(L), 2, 3), valu("v_mul_lo_u32", v(X), v(X), sT0),
          valu("v_lshrrev_b32", v(Y), 5, v(L)), valu("v_lshl_add_u32", v(X), v(Y), 8, v(X)),
          valu("v_and_b32", v(Y), 3, v(L)), valu("v_lshl_add_u32", v(X), v(Y), 3, v(X)),
          valu("v_subrev_u32", v(vVb), sW2112, v(X)),
          valu("v_add_u32", v(vK), sTop, v(vKb)), valu("v_add_u32", v(vV), sTop, v(vVb)),
          comment("row-sum operand: ones in rows 0,4,8,12"),
          valu("v_mov_b32", v(X), "0x3f803f80"), valu("v_cmp_eq_u32", "vcc", 0, v(Y)), nop(1),
          valu("v_cndmask_b32", v(X), 0, v(X), "vcc")]
    o += [valu("v_accvgpr_write_b32", a(aONE + i), v(X)) for i in range(4)]
    o += [salu("s_mov_b32", sC, hex(fbits(c))), salu("s_mov_b32", sRd, sTop), salu("s_mov_b32", sKV, 3 * 8192),
          salu("s_mov_b32", sQ, sNx0), salu("s_mov_b32", sO, 0), salu("s_mov_b32", sSM, sStg),
          salu("s_mov_b32", sRound, 4), salu("s_mov_b32", sFlag, 0),
          salu("s_mov_b32", sLo, hex(L_LO)), salu("s_mov_b32", sSpan, hex(L_HI - L_LO)),
          valu("v_mov_b32", v(vSt), v(vStb))]
    o += [valu("v_xor_b32", v(vQx + ks - 1), 64 * ks, v(vQa)) for ks in (1, 2, 3)]
    o += [valu("v_xor_b32", v(vOx + j - 1), 32 * j, v(vOw)) for j in range(1, 8)]
    if OPT.get("defer", "1") == "1": o += [salu("s_mov_b32", sKV, "0x40000000"), salu("s_mov_b32", sQ, "0x40000000")]
    o += pro_load(PRO[3])
    o += [salu("s_mov_b64", "vcc", -1), wait(vm=8), need("kv", 4), barrier()]
    o += [kread(i) for i in range(8)] + qreads(0, tag="q0") + pro_load(PRO[4]) + [wait(lgkm=0)]
    o += weave([qk(0, i) for i in range(8)], [vread(j) for j in range(4)])
    o += [wait(vm=8)] + qreads(1, tag="q0")
    return o

def slow():
    Q, S, P, O, K, V, Lr = 0, 16, 24, 32, 64, 96, 128
    M, M2, AK, AV, AL, AQ = 132, 133, 134, 135, 136, 137
    o = [label("L_slow"), wait(vm=0, lgkm=0), salu("s_mov_b32", "s14", QBYTES)] + role_bases()
    o += [salu("s_add_u32", sT0, sStg, sW2112), valu("v_add_u32", v(AK), sT0, v(vKb)), valu("v_add_u32", v(AV), sT0, v(vVb)),
          valu("v_and_b32", v(AL), 1023, v(vLin)), valu("v_mov_b32", v(AQ), v(vQ6)),
          salu("s_mov_b32", sRound, 0),
          label("L_sround")] + next_bases() + [salu("s_mov_b32", sI, 0),
          label("L_ssub"),
          scmp("s_cmp_eq_u32", sI, 6), salu("s_cselect_b32", sT1, 6, 7), salu("s_lshl_b32", sT0, sRound, 1), salu("s_sub_u32", sT1, sT1, sT0),
          scmp("s_bitcmp1_b32", sFlag, sT1), branch("s_cbranch_scc0", "L_snext"),
          salu("s_lshl_b32", sT0, sI, 12), salu("s_add_u32", sO, sNx0, sT0), scmp("s_cmp_eq_u32", sI, 6), salu("s_cselect_b32", sO, sNx6, sO)]
    o += [bload(v(Q + 4 * ks, 4), v(AQ), SQ, sO, 64 * ks) for ks in range(4)]
    def fetch(srd, off):
        r = []
        for n in range(8):
            r += [salu("s_add_u32", "m0", sStg, off + PITCH * n), salu("s_add_u32", sT0, sKV, 1024 * n), dma(v(AL), srd, sT0)]
        return r
    kr = [dsread("ds_read_b128", v(K + 4 * i, 4), v(AK), (i >> 2) * 512 + (i & 3) * 64) for i in range(8)]
    qks = [mfma(v(S + 4 * (i >> 2), 4), v(K + 4 * i, 4), v(Q + 4 * (i & 3), 4), 0 if i & 3 == 0 else v(S + 4 * (i >> 2), 4)) for i in range(8)]
    loop = lambda lab: [salu("s_add_u32", sKV, sKV, 8192), salu("s_add_u32", sJ, sJ, 1), scmp("s_cmp_lt_u32", sJ, 16), branch("s_cbranch_scc1", lab)]
    start = [salu("s_lshl_b32", sKV, sRound, 17), salu("s_mov_b32", sJ, 0)]
    o += [valu("v_mov_b32", v(M), "0xff800000")] + start + [label("L_smax")]
    o += fetch(SK, 0) + [wait(vm=0)] + kr + [wait(lgkm=0)] + qks + [nop(8)]
    o += [valu("v_max3_f32", v(M), v(M), v(S + 2 * i), v(S + 2 * i + 1)) for i in range(4)] + loop("L_smax")
    for sw in ("v_permlane32_swap_b32", "v_permlane16_swap_b32"):
        o += [valu("v_mov_b32", v(M2), v(M)), nop(1), I(f"{sw} v{M}, v{M2}", "valu", [f"v{M}", f"v{M2}"], [f"v{M}", f"v{M2}"]), nop(1),
              valu("v_max_f32", v(M), v(M), v(M2))]
    o += [valu("v_mov_b32", v(O + i), 0) for i in range(32)] + [valu("v_mov_b32", v(Lr + i), 0) for i in range(4)]
    o += start + [label("L_spv")]
    o += fetch(SK, 0) + fetch(SV, BLK) + [wait(vm=0)] + kr + [wait(lgkm=0)]
    o += [dsread("ds_read_b64_tr_b16", v(V + 4 * j + 2 * hb, 2), v(AV), BLK + hb * 512 + j * 32) for j in range(8) for hb in (0, 1)]
    o += qks + [nop(8)]
    o += [valu("v_sub_f32", v(S + i), v(S + i), v(M)) for i in range(8)] + [valu("v_mul_f32", v(S + i), sC, v(S + i)) for i in range(8)]
    o += [valu("v_exp_f32", v(S + i), v(S + i)) for i in range(8)] + [nop(0)]
    o += [valu("v_cvt_pk_bf16_f32", v(P + i), v(S + 2 * i), v(S + 2 * i + 1)) for i in range(4)] + [wait(lgkm=0), nop(1)]
    o += [mfma(v(Lr, 4), a(aONE, 4), v(P, 4), v(Lr, 4))] + [mfma(v(O + 4 * j, 4), v(V + 4 * j, 4), v(P, 4), v(O + 4 * j, 4)) for j in range(8)]
    o += loop("L_spv") + [nop(8), valu("v_rcp_f32", v(Lr), v(Lr)), nop(0)]
    o += [valu("v_mul_f32", v(O + i), v(O + i), v(Lr)) for i in range(32)]
    for j in range(8):
        o += [valu("v_cvt_pk_bf16_f32", v(O + 4 * j + i), v(O + 4 * j + 2 * i), v(O + 4 * j + 2 * i + 1)) for i in range(2)]
    o += [bstore(v(O + 4 * j, 2), v(vFr), SO, sO, 32 * j, op="buffer_store_dwordx2") for j in range(8)] + [wait(vm=0)]
    o += [label("L_snext"), salu("s_add_u32", sI, sI, 1), scmp("s_cmp_lt_u32", sI, 7), branch("s_cbranch_scc1", "L_ssub"),
          salu("s_add_u32", sRound, sRound, 1), scmp("s_cmp_lt_u32", sRound, 4), branch("s_cbranch_scc1", "L_sround")]
    return o

def build():
    VA = {0: 8, 1: 8, 2: 12, 3: 12}
    FA = step(ORDER7, True, plan_a(True), 2)
    PA = {p: step(ORDER7, False, plan_a(p != 3), VA[p], "L_exitA" if p == 3 else None) for p in range(4)}
    VB = {0: 11, 1: 7, 2: 9, 3: 13}; VFB = {0: 4, 1: 8, 2: 9, 3: 9}
    ordb = lambda p: ORDER7 if p == 0 else ORDER6
    FB = {p: step(ordb(p), True, plan_b(p), VFB[p], zero6=False) for p in range(4)}
    PB = {p: step(ordb(p), False, plan_b(p), VB[p], "L_exitB") for p in range(4)}
    if OPT.get("verbose"):
        print("A steps", [PA[p][3] for p in range(4)], file=sys.stderr)
        print("B steps", [PB[p][3] for p in range(4)], "barrier intervals", [PB[p][3] - PB[p][2] + PB[(p + 1) % 4][2] for p in range(4)], file=sys.stderr)
    both = lambda s_: s_[0] + s_[1]
    jump = lambda l: [branch("s_branch", l)]
    pro = prologue()
    sel = [scmp("s_cmp_eq_u32", sRole, 0), branch("s_cbranch_scc1", "L_headA"), branch("s_branch", "L_headB")]
    ex = lambda r: stamp() + [salu("s_sub_u32", sRound, sRound, 1), scmp("s_cmp_eq_u32", sRound, 0), branch("s_cbranch_scc1", f"L_tail{r}")]
    exA, exB, bA, bB, hA, hB, tA, tB = ex("A"), ex("B"), boundary("A"), boundary("B"), head0("A") + stamp(), head0("B") + stamp(), tail("A"), tail("B")
    fin = stamp() + ([wait(vm=0)] + stamp() if OPT["stamps"] else []) + dbg_end() + \
        [scmp("s_cmp_eq_u32", sFlag, 0), branch("s_cbranch_scc1", "L_end")]
    sl = slow()
    prog = pro + sel
    prog += [label("L_exitB")] + exB + bB + [label("L_headA")] + hA + both(FA)
    prog += [label("L_pa1")] + both(PA[1]) + both(PA[2]) + both(PA[3]) + both(PA[0]) + jump("L_pa1")
    prog += [label("L_exitA")] + exA + bA + [label("L_headB")] + hB + enter_b() + both(FB[0])
    prog += [label("L_pb1")] + both(PB[1]) + [label("L_pb2")] + both(PB[2]) + [label("L_pb3")] + both(PB[3]) + [label("L_pb0")] + both(PB[0]) + jump("L_pb1")
    for w in (1, 2, 3): prog += [label(f"L_fb{w}")] + both(FB[w]) + jump(f"L_pb{(w + 1) % 4}")
    prog += [label("L_tailB")] + tB + jump("L_fin") + [label("L_tailA")] + tA + [label("L_fin")] + fin + sl + [label("L_end"), raw("s_endpgm")]
    prog, far = expand(prog, "emit")
    k = next(i for i, x in enumerate(prog) if x.text == "L_exitB:")
    prog = prog[:k] + far + prog[k:]
    errs = check(sl, "slow")
    for w in range(4):
        ra = hA + both(FA) + flat(both(PA[j % 4]) for j in range(1, 15)) + PA[3][0] + exA
        rb = hB + enter_b() + both(FB[w]) + flat(both(PB[(w + j) % 4]) for j in range(1, 15)) + PB[(w + 15) % 4][0] + exB
        errs += check(pro + sel + expand(ra, "on") + expand(bA + rb + bB + ra + bA + rb + tB + fin, "off"), f"AB w{w}")
        errs += check(pro + sel + expand(rb, "on") + expand(bB + ra + bA + rb + bB + ra + tA + fin, "off"), f"BA w{w}")
    errs = list(dict.fromkeys(errs))
    for e in errs[:40]: print("CHECK:", e, file=sys.stderr)
    return prog, errs

HEADER = """; Attention forward, B=16 H=32 Sq=848 Sk=512 D=128, bf16 (written by the generator gen/gen.py).
; One workgroup per CU, four heads per pair of workgroups. Per head one workgroup takes rows 0..447 (round A: 7 x 16 rows
; S^T = K Q^T and O^T = V^T P^T with 16x16x32 MFMA; K/V stream through an LDS ring, Q/O through per-wave LDS staging.
; exp2 runs without max subtraction; every row sum is range-checked and rows outside [2^-24, 2^40] are recomputed
; @launch grid=(256,1,1) block=(256,1,1) lds=%d
.amdgcn_target "amdgcn-amd-amdhsa--gfx950"
.text
.globl %s
.p2align 8
.type %s,@function
%s:
"""
FOOTER = """.section .rodata,"a"
.p2align 6
.amdhsa_kernel %s
  .amdhsa_next_free_vgpr 512
  .amdhsa_next_free_sgpr 96
  .amdhsa_accum_offset 256
  .amdhsa_group_segment_fixed_size 0
  .amdhsa_kernarg_size 48
  .amdhsa_user_sgpr_count 2
  .amdhsa_user_sgpr_kernarg_segment_ptr 1
  .amdhsa_system_sgpr_workgroup_id_x 1
  .amdhsa_float_denorm_mode_32 3
.end_amdhsa_kernel
"""

def emit(path):
    prog, errs = build()
    with open(path, "w") as f:
        f.write(HEADER % (LDS, KNAME, KNAME, KNAME))
        for x in prog:
            if x.text: f.write(("" if x.text.endswith(":") else "    ") + x.text + "\n")
        f.write(FOOTER % KNAME)
    return errs

if __name__ == "__main__":
    out = sys.argv[1]
    for kv in sys.argv[2:]:
        k, val = kv.split("=")
        OPT[k] = val.replace("+", " ")
    sys.exit(1 if emit(out) else 0)
```

```python
import re

class I:
    __slots__ = ("text", "kind", "rd", "wr", "rdC", "info")
    def __init__(self, text, kind, rd=(), wr=(), rdC=(), info=None):
        self.text = text; self.kind = kind
        self.rd = frozenset(rd); self.wr = frozenset(wr); self.rdC = frozenset(rdC); self.info = info
    def __repr__(self): return self.text

def regs(spec):
    spec = spec.strip()
    if spec.startswith("-"): spec = spec[1:]
    m = re.fullmatch(r"([vas])\[(\d+):(\d+)\]", spec)
    if m: return [f"{m.group(1)}{i}" for i in range(int(m.group(2)), int(m.group(3)) + 1)]
    m = re.fullmatch(r"([vas])(\d+)", spec)
    if m: return [spec]
    if spec == "vcc": return ["vcc"]
    if spec in ("m0", "exec"): return [spec]
    return []

def R(t, a, n=1):
    return f"{t}{a}" if n == 1 else f"{t}[{a}:{a+n-1}]"

TRANS = ("v_exp_f32", "v_rcp_f32", "v_log_f32")

def valu(op, dst, *src, mods="", rmw=False):
    rd = [r for s in src for r in regs(str(s))]
    if rmw: rd += regs(dst)
    kind = "trans" if op in TRANS else "valu"
    t = f"{op} {dst}, " + ", ".join(str(s) for s in src) + (" " + mods if mods else "")
    return I(t, kind, rd, regs(dst))

def salu(op, dst, *src):
    rd = [r for s in src for r in regs(str(s))]
    t = f"{op} {dst}" + "".join(f", {s}" for s in src)
    return I(t, "salu", rd, regs(dst))

def scmp(op, a, b):
    return I(f"{op} {a}, {b}", "salu", regs(str(a)) + regs(str(b)), ())

def mfma(d, a, b, c):
    return I(f"v_mfma_f32_16x16x32_bf16 {d}, {a}, {b}, {c}", "mfma", regs(a) + regs(b), regs(d), regs(str(c)))

def dsread(op, dst, addr, off):
    return I(f"{op} {dst}, {addr} offset:{off}", "dsr", regs(addr), regs(dst))

def dswrite(op, addr, data, off):
    return I(f"{op} {addr}, {data} offset:{off}", "dsw", regs(addr) + regs(data), ())

def dma(voff, srd, soff, off=0, flags="", tag=None):
    t = f"buffer_load_dwordx4 {voff}, {srd}, {soff} offen" + (f" offset:{off}" if off else "") + (f" {flags}" if flags else "") + " lds"
    return I(t, "dma", regs(voff) + regs(srd) + regs(str(soff)) + ["m0"], (), info=tag)

def bload(dst, voff, srd, soff, off=0, flags="", op="buffer_load_dwordx4", tag=None):
    t = f"{op} {dst}, {voff}, {srd}, {soff} offen" + (f" offset:{off}" if off else "") + (f" {flags}" if flags else "")
    return I(t, "vld", regs(voff) + regs(srd) + regs(str(soff)), regs(dst), info=tag)

def bstore(data, voff, srd, soff, off=0, flags="", op="buffer_store_dwordx4", tag=None):
    t = f"{op} {data}, {voff}, {srd}, {soff} offen" + (f" offset:{off}" if off else "") + (f" {flags}" if flags else "")
    return I(t, "vst", regs(data) + regs(voff) + regs(srd) + regs(str(soff)), (), info=(tag, regs(data)))

def wait(vm=None, lgkm=None):
    t = "s_waitcnt" + (f" vmcnt({vm})" if vm is not None else "") + (f" lgkmcnt({lgkm})" if lgkm is not None else "")
    return I(t, "wait", info=(vm, lgkm))

def nop(n=0): return I(f"s_nop {n}", "nop", info=n)
def barrier(): return I("s_barrier", "barrier")
def label(n): return I(f"{n}:", "label")
def branch(op, target): return I(f"{op} {target}", "branch")
def raw(text, kind="other", rd=(), wr=()): return I(text, kind, rd, wr)
def comment(t): return I(f"; {t}", "label")
def need(tag, n):
    return I("", "need", info=(tag, n))
def reset(tag, issued_q=0): return I("", "reset", info=(tag, issued_q))

VAL = ("valu", "trans")

def check(seq, name="", slack=None):
    errs = []
    full = [x for x in seq if x.kind != "label"]
    seq = [x for x in full if x.kind not in ("need", "reset")]
    pos = []; p = 0
    for x in seq:
        pos.append(p)
        p += (x.info + 1) if x.kind == "nop" else 1
    def dist(i, j): return pos[j] - pos[i] - 1
    for j, y in enumerate(seq):
        for i in range(j - 1, max(-1, j - 12), -1):
            x = seq[i]; d = dist(i, j)
            need = 0; why = ""
            yr = y.rd | y.rdC
            if x.kind == "mfma":
                if y.kind in VAL and x.wr & (yr | y.wr): need, why = 8, "mfma D -> valu"
                elif y.kind in ("dsw", "vst", "dsr", "vld", "dma") and x.wr & (yr | y.wr): need, why = 8, "mfma D -> mem"
                elif y.kind == "mfma" and x.wr & y.rd: need, why = 8, "mfma D -> mfma A/B"
                elif y.kind == "mfma" and x.wr & y.rdC and x.wr != y.rdC: need, why = 6, "mfma D -> overlapping C"
                elif y.kind in VAL and x.rdC & y.wr: need, why = 3, "mfma C WAR"
            elif x.kind in VAL:
                sw = {r for r in x.wr if r[0] == "s" or r == "vcc"}
                if y.kind == "mfma" and x.wr & yr: need, why = 2, "valu -> mfma"
                elif y.kind in ("dma", "vld", "vst") and sw & yr: need, why = 5, "valu sgpr -> vmem"
                elif y.kind in VAL and sw & yr: need, why = 2, "valu sgpr -> valu"
                elif y.kind in VAL and "permlane" in y.text and x.wr & yr: need, why = 2, "valu -> permlane"
                elif y.kind in VAL and "readfirstlane" in y.text and x.wr & yr: need, why = 1, "valu -> readfirstlane"
                elif x.kind == "trans" and y.kind == "valu" and x.wr & yr: need, why = 1, "trans -> valu"
            elif x.kind == "salu" and "m0" in x.wr and y.kind == "dma": need, why = 1, "m0 -> dma"
            elif x.kind == "vst" and y.kind in VAL and set(x.info[1]) & y.wr: need, why = 2, "store data WAR"
            if d < need: errs.append(f"{name}: {why} need {need} have {d}: [{x.text}] -> [{y.text}]")
    lg = []; vm = []; issued = {}; nbar = 0
    tagof = lambda x: x.info[0] if x.kind == "vst" else x.info
    for y in full:
        if y.kind == "reset":
            issued[y.info[0]] = y.info[1]; continue
        if y.kind == "need":
            tag, n = y.info
            if n == "step":
                nbar += 1; n = 4 * (nbar + 1)
                if any("_tr_" in x.text for x in lg): errs.append(f"{name}: ring read still pending at barrier")
            done = issued.get(tag, 0) - sum(1 for x in vm if tagof(x) == tag)
            if slack is not None and y.info[1] == "step": slack.setdefault(id(y), []).append(done - n)
            if done < n: errs.append(f"{name}: need {n} retired '{tag}' ops, have {done} (issued {issued.get(tag, 0)})")
            continue
        if y.kind in ("dma", "vld", "vst"): issued[tagof(y)] = issued.get(tagof(y), 0) + 1
        if y.kind == "wait" and y.info[1] is not None and y.info[1] > 14: errs.append(f"{name}: lgkmcnt too large")
        use = y.rd | y.rdC | y.wr
        for q, nm in ((lg, "lgkm"), (vm, "vm")):
            for x in q:
                if x.wr & use: errs.append(f"{name}: pending {nm} [{x.text}] used by [{y.text}]")
        if y.kind in ("dsr", "dsw", "smem"): lg.append(y)
        elif y.kind in ("dma", "vld", "vst"): vm.append(y)
        elif y.kind == "wait":
            v, l = y.info
            if v is not None: vm = vm[len(vm) - v:] if v < len(vm) else vm
            if v == 0: vm = []
            if l is not None: lg = lg[len(lg) - l:] if l < len(lg) else lg
            if l == 0: lg = []
    return errs

class AutoWait(I):
    __slots__ = ()
    def set(self, n):
        self.info = (n, None); self.text = f"s_waitcnt vmcnt({n})"
def autowait(n):
    w = AutoWait("", "wait"); w.set(n); return w

def tighten(seq):
    vm = []; nkv = 0; nbar = 0; changed = False; prev = None
    for y in seq:
        if y.kind in ("dma", "vld", "vst"):
            isk = y.kind == "dma" and y.info == "kv"
            nkv += isk
            vm.append(nkv if isk else 0)
        elif y.kind == "wait" and y.info[0] is not None:
            vm = vm[max(0, len(vm) - y.info[0]):] if y.info[0] else []
        elif y.kind == "need" and y.info[1] == "step":
            nbar += 1
            bad = [i for i, z in enumerate(vm) if 0 < z <= 4 * (nbar + 1)]
            if bad and isinstance(prev, AutoWait):
                prev.set(len(vm) - 1 - max(bad)); vm = vm[max(bad) + 1:]; changed = True
        if y.kind not in ("label",): prev = y
    return changed
```

```python
import sys, struct, math
from asmlib import *

KNAME = "standalone__gqa_softmax__near_ridge_kernel"
OPT = dict(kv="", q="nt", o="sc1", ot="nt", rot="mix", stamps=False)

HEAD_Q = 848 * 256
HEAD_KV = 512 * 256
QBYTES = 512 * HEAD_Q
PITCH = 1056
BLK = 8 * PITCH
SLOT = 2 * BLK
import os
NR = int(os.environ.get("NR", 3))
STG0 = NR * SLOT
STGW = (6 if NR == 3 else 5) * 4096
LSUM = STG0 + 4 * STGW
LDS = LSUM + 1024
ORDER7 = [0, 1, 2, 6, 3, 4, 5]
ORDER6 = [0, 1, 2, 3, 4, 5]

vS, vT, vP = 192, 200, 208
vK, vV, vKb, vVb, vSt, vLin, vSw0, vSw1, vQa, vOw, vFr, vStb = range(212, 224)
vTMP = 224
vQx = 232
vOx = 235
vRc = 242
vMx, vMn, vQ6 = 250, 251, 255
aQ, aQ6n, aK, aV, aL, aONE, aO6 = 0, 112, 128, 160, 192, 220, 224
SK, SV, SQ, SO = "s[4:7]", "s[8:11]", "s[12:15]", "s[16:19]"
(sW, sC, sRd, sTop, sW2112, sKV, sQ, sO, sSM, sCnt, sRound, sCur0, sCur6, sNx0, sNx6,
 sE0, sE6, sF0, sF6, sHead, sFlag, sStg, sT0, sT1, sT2, sLo, sSpan, sPair, sRole, sI, sJ) = [f"s{i}" for i in range(28, 59)]
sLinKV, sRot = "s59", "s3"

def v(i, n=1): return R("v", i, n)
def a(i, n=1): return R("a", i, n)
def Oreg(t, j): return a(aO6 + 4 * j, 4) if t == 6 else v(32 * t + 4 * j, 4)
def fbits(x): return struct.unpack("<I", struct.pack("<f", x))[0]
L_LO, L_HI = fbits(2.0 ** -24), fbits(2.0 ** 40)

def qk(t, i):
    hb, ks = i >> 2, i & 3
    d = v(vS + 4 * hb, 4)
    return mfma(d, a(aK + 4 * i, 4), a(aQ + 16 * t + 4 * ks, 4), 0 if ks == 0 else d)
def pv(t, j, first):
    d = Oreg(t, j)
    return mfma(d, a(aV + 4 * j, 4), v(vP, 4), 0 if first else d)
def summ(t, first):
    d = a(aL + 4 * t, 4)
    return mfma(d, a(aONE, 4), v(vP, 4), 0 if first else d)

def softmax_groups():
    m = lambda i: valu("v_mul_f32", v(vT + i), sC, v(vS + i))
    e = lambda i: valu("v_exp_f32", v(vT + i), v(vT + i))
    c = lambda i: valu("v_cvt_pk_bf16_f32", v(vP + i), v(vT + 2 * i), v(vT + 2 * i + 1))
    return [[m(0), m(1)], [e(0)], [e(1)], [m(2), m(3)], [e(2)], [m(4), m(5)], [e(3)], [m(6), m(7)],
            [e(4)], [e(5)], [c(0), c(1)], [e(6)], [e(7)], [c(2), c(3)]]
HEAD0, HEADL = 8, 7

def kread(i): return dsread("ds_read_b128", a(aK + 4 * i, 4), v(vK), (i >> 2) * 512 + (i & 3) * 64)
def vread(j): return [dsread("ds_read_b64_tr_b16", a(aV + 4 * j + 2 * hb, 2), v(vV), BLK + hb * 512 + j * 32) for hb in (0, 1)]

def gap_cost(ins):
    t = 4; prev = "mfma"
    for x in ins:
        k = x.kind
        if k in ("label", "need", "reset"): continue
        if k in VAL:
            if prev == "ds": t += 4
            t = max(t, 8) + (8 if k == "trans" else 4); prev = "valu"
        elif k == "dsr":
            if prev == "valu": t += 4
            t += 4; prev = "ds"
        else:
            if prev == "ds": t += 4
            t += {"dma": 12, "vst": 24, "barrier": 13, "branch": 8}.get(k, 4); prev = k
    if prev == "ds": t += 4
    return max(16, t)

class Stub(I):
    __slots__ = ("code", "skip", "name")
    n = 0
    def __init__(self, code, skip=()):
        Stub.n += 1
        self.name = f"L_stub{Stub.n}"; self.code = code; self.skip = list(skip)
        I.__init__(self, f"s_cbranch_vccnz {self.name}", "branch")
def expand(seq, mode):
    out = []; far = []
    for x in seq:
        if x.kind == "dma" and str(x.info).endswith("?") and mode == "off":
            x = I(x.text, x.kind, x.rd, x.wr, info=x.info[:-1])
        if not isinstance(x, Stub): out.append(x); continue
        br = I(x.text, "branch")
        if mode == "emit":
            out += [br] + x.skip + [label(x.name + "r")]
            far += [label(x.name)] + x.code + [branch("s_branch", x.name + "r")]
        elif mode == "on": out += [br] + x.code + [I("s_branch", "branch")]
        else: out += [br] + x.skip
    return (out, far) if mode == "emit" else out

def step(order, first, plan, vmN, exit_label=None, zero6=True):
    n = len(order); NG = 17 * n
    at = lambda k, g: 17 * ((k - 1) % n) + g
    kvf, qf, of = OPT["kv"], OPT["q"], OPT["o"]
    job = "st0" in plan
    ops = {
        "bar": [autowait(vmN), need("kv", "step"), barrier()],
        "d0": [dma(v(vLin), SK, sKV, 0, kvf, "kv")], "d1": [dma(v(vLin), SK, sKV, 1024, kvf, "kv")],
        "d2": [dma(v(vLin), SV, sKV, 0, kvf, "kv")], "d3": [dma(v(vLin), SV, sKV, 1024, kvf, "kv")],
        "jr": [dsread("ds_read_b128", v(vTMP, 4), v(vSt), 0), dsread("ds_read_b128", v(vTMP + 4, 4), v(vSt), 1024)],
        "st0": [bstore(v(vTMP, 4), v(vSw0), SO, sO, 0, of)], "st1": [bstore(v(vTMP + 4, 4), v(vSw1), SO, sO, 1024, of)],
        "q0": [dma(v(vSw0), SQ, sQ, 0, qf, "q")], "q1": [dma(v(vSw1), SQ, sQ, 1024, qf, "q")],
        "upk": [valu("v_add_u32", v(vK), sRd, v(vKb))], "upv": [valu("v_add_u32", v(vV), sRd, v(vVb))],
        "ups": [valu("v_add_u32", v(vSt), 2048, v(vSt))],
        "last": [branch("s_cbranch_scc1", exit_label)] if exit_label else [],
    }
    for j in range(8): ops[f"v{j}"] = vread(j); ops[f"k{j}"] = [kread(j)]
    body = [[] for _ in range(NG)]; pre = [[] for _ in range(NG)]
    free = set(); extra = []; idx = {}
    for name, pos in plan.items():
        i = at(pos[0], pos[1]); idx[name] = i
        if len(pos) > 2: extra.append((i, ops[name]))
        else: free.add(i); body[i] += ops.get(name, [])
    for k in range(n):
        gaps = [at(k, g) for g in range(7, 17)] + [at(k + 1, g) for g in range(7)]
        nf = [sum(i in free for i in gaps[:10]), sum(i in free for i in gaps[10:])]
        assert sum(nf) == 3, (k, nf)
        if k == 0: assert 10 - nf[0] == HEAD0
        if k == n - 1: assert 10 - nf[0] == HEADL
        gs = softmax_groups()
        for i in gaps:
            if i not in free: body[i] += gs.pop(0)
    for i, ins in extra: body[i] += ins
    ms = [None] * NG
    for k in range(n):
        t, tp = order[k], order[k - 1]
        z = first and (tp != 6 or zero6)
        pvs = [pv(tp, j, z) for j in range(8)]
        seq = [qk(t, i) for i in range(8)] + ((pvs + [summ(tp, z)]) if k == 0 else ([summ(tp, z)] + pvs))
        for g in range(17): ms[at(k, g)] = seq[g]
    def can(i): return not pre[i] and (not body[i] or body[i][0].kind in VAL)
    def place(ins, lo, hi, latest=True):
        cand = [i for i in range(lo, hi) if can(i)]
        assert cand, (ins.text, lo, hi)
        i = cand[-1] if latest else cand[0]
        pre[i].append(ins); return i
    pend = [(-7, x) for j in range(4) for x in vread(j)]
    waits = []
    for i in range(NG):
        cons = [(ms[i], i)] + [(x, i) for x in body[i] if x.kind == "vst"]
        for y, _ in cons:
            hit = [p for p, (gi, x) in enumerate(pend) if x.wr & (y.rd | y.rdC)]
            if not hit: continue
            p = max(hit)
            cand = [h for h in range(max(pend[p][0] + 1, 0), i) if can(h)]
            assert cand, (y.text, i)
            h = cand[-1]
            while p + 1 < len(pend) and pend[p + 1][0] <= h - 6: p += 1
            pre[h].append(wait(lgkm=sum(1 for gi, x in pend[p + 1:] if gi < h)))
            pend = pend[p + 1:]
        pend += [(i, x) for x in body[i] if x.kind == "dsr"]
    m0 = {"d0": salu("s_mov_b32", "m0", sRd), "d1": salu("s_add_u32", "m0", sRd, 32),
          "d2": salu("s_add_u32", "m0", sRd, BLK), "d3": salu("s_add_u32", "m0", sRd, BLK + 32),
          "q0": salu("s_mov_b32", "m0", sSM), "q1": salu("s_mov_b32", "m0", sSM)}
    dm = sorted((idx[nm], nm) for nm in m0 if nm in idx)
    prev = (-1, None); m0pos = {}
    for i, nm in dm:
        if not (nm == "q1" and prev[1] == "q0"): m0pos[nm] = place(m0[nm], prev[0] + 1, i)
        prev = (i, nm)
    assert idx["bar"] < min(idx[d] for d in ("d0", "d1", "d2", "d3"))
    assert idx["bar"] > at(1, 14)
    lastd = max(idx[d] for d in ("d0", "d1", "d2", "d3"))
    up = min(idx["upk"], idx["upv"])
    cand = [i for i in range(max(m0pos[d] for d in ("d0", "d1", "d2", "d3")) + 1, up) if can(i)]
    pair = [(x, y) for x, y in zip(cand, cand[1:]) if all(not pre[z] or pre[z][0].kind == "wait" or pre[z][0].text.startswith("s_mov") for z in range(x, y))]
    x, y = pair[0]
    pre[x].append(salu("s_sub_u32", sRd, sRd, SLOT)); pre[y].append(salu("s_cselect_b32", sRd, sTop, sRd))
    lo = max(y, lastd) + 1
    hi = idx["last"]
    if exit_label: hi = place(salu("s_sub_u32", sCnt, sCnt, 1), lo, hi)
    i1 = place(salu("s_add_u32", sLinKV, sLinKV, 8192), lo, hi, False)
    place(salu("s_xor_b32", sKV, sLinKV, sRot), i1 + 1, hi, False)
    if job:
        place(salu("s_add_u32", sO, sO, 2048), max(lo, idx["st1"] + 1), hi, False)
        place(salu("s_add_u32", sQ, sQ, 2048), max(lo, idx["q1"] + 1), hi, False)
        place(salu("s_add_u32", sSM, sSM, 2048), max(lo, idx["q1"] + 1), hi, False)
        assert idx["jr"] < idx["ups"] and idx["st0"] < idx["q0"] and idx["jr"] < idx["st0"]
    assert idx["upv"] > idx["v7"] and idx["upk"] < idx["k0"]
    if first:
        todo = [f"Q{t_}" for t_ in order[3:]] + ["KV2"] + ([] if n == 7 else ["Q6"])
        for h in range(NG):
            for z in body[h]:
                if z.kind == "dma": z.info += "?"
        hist = list(PRO)
        sites = []
        for k in range(1, n - 1):
            i = at(k, 12)
            while not can(i) or x < i <= y: i -= 1
            sites.append((i, order[k + 1]))
        i = NG - 1
        while not can(i): i -= 1
        sites += [(i, None), (idx["bar"], "bar")]
        done = 0
        for i, t_ in sorted(sites, key=lambda z: z[0]):
            hist += ["x" for h in range(done, i) for z in body[h] if z.kind in ("dma", "vst")]; done = i
            after = lambda nm: sum(1 if z == "x" else 4 for z in hist[hist.index(nm) + 1:])
            if t_ == "bar":
                body[i][0] = Stub([wait(vm=after("KV1"))], [body[i][0]]); continue
            code = []
            while todo and (t_ is None or f"Q{t_}" not in hist or sum(z != "x" for z in hist[hist.index(f"Q{t_}") + 1:]) < int(OPT.get("ahead", 2))):
                hist.append(todo[0]); code += pro_load(todo.pop(0))
            last = [z for z in hist if z != "x"][-1]
            if t_ is None:
                for b_ in range(3, NR + 1): code += pro_load(f"KV{b_}"); hist += ["x"] * 4
                code += [salu("s_mov_b32", sLinKV, (NR + 1) * 8192), salu("s_xor_b32", sKV, sLinKV, sRot)]
                if job:
                    code += [salu("s_mov_b32", "m0", sStg), salu("s_add_u32", sQ, sNx0, 2048),
                             dma(v(vSw0), SQ, sNx0, 0, qf, "q"), dma(v(vSw1), SQ, sNx0, 1024, qf, "q")] + ops["st0"] + ops["st1"]; hist += ["x"] * 4
                else: code += [salu("s_mov_b32", sQ, sNx0)]
            if code: code = [salu("s_mov_b32", sT2, "m0")] + code + [salu("s_mov_b32", "m0", sT2)]
            code.append(wait(vm=after(last if t_ is None else f"Q{t_}")))
            if t_ not in (None, 6): code += qreads(t_, tag="q0") + [wait(lgkm=0)]
            pre[i].append(Stub(code))
    out = []; t = 0; tb = None
    drop = OPT.get("drop", "").split()
    for i in range(NG):
        if i % 17 == 0:
            k = (i // 17 + 1) % n
            out.append(comment(f"slot {k}: QK subtile {order[k]}, PV subtile {order[k-1]}"))
        if i == 17 * (n - 1): cut = len(out) - 1
        if i == idx["bar"]: tb = t
        g = [x for x in pre[i] + body[i] if x.kind not in drop]
        out.append(ms[i]); out += g; t += gap_cost(g)
    return out[:cut], out[cut:], tb, t

PRO = ["KV0", "Q0", "Q1", "KV1", "Q2"]
def pro_load(x):
    n_ = int(x[-1]); o = []
    if x[0] == "K":
        for srd, off in ((SK, 0), (SV, BLK)):
            sl = (NR - 1 - n_) % NR * SLOT + off
            tag = "kv"
            o += [salu("s_add_u32", "m0", sW2112, sl), salu("s_xor_b32", sT0, n_ * 8192, sRot), dma(v(vLin), srd, sT0, 0, OPT["kv"], tag),
                  salu("s_add_u32", "m0", sW2112, sl + 32), nop(0), dma(v(vLin), srd, sT0, 1024, OPT["kv"], tag)]
        return o
    if n_ == 6: return q6loads(sCur6)
    return [salu("s_add_u32", "m0", sStg, 4096 * n_), salu("s_add_u32", sT0, sCur0, 4096 * n_)] + \
           [dma(v(vSw1 if n & 1 else vSw0), SQ, sT0, 1024 * n, OPT["q"], "q0") for n in range(4)]

def vk_sites(n, v67=(7, 7)):
    L = n - 1
    return {"v0": (0, 10), "v1": (0, 10), "v2": (0, 14), "v3": (0, 14), "v4": (1, 1), "v5": (1, 1), "v6": (1, v67[0]), "v7": (1, v67[1]),
            "k0": (L, 1), "k1": (L, 1), "k2": (L, 5), "k3": (L, 5), "k4": (L, 8), "k5": (L, 8), "k6": (L, 11), "k7": (L, 11), "last": (L, 16)}

def plan_a(job):
    p = vk_sites(7)
    p.update({"bar": (2, 0), "d0": (2, 4), "d1": (2, 9), "d2": (2, 14), "d3": (3, 2), "upk": (3, 13), "upv": (3, 13)})
    if job: p.update({"jr": (3, 9), "st0": (4, 3), "st1": (4, 9), "q0": (4, 14), "q1": (5, 2), "ups": (5, 10)})
    else: p.update({"e0": (3, 9), "e1": (4, 3), "e2": (4, 9), "e3": (4, 14), "e4": (5, 2), "e5": (5, 10)})
    return p

def plan_b(p_):
    if p_ == 0:
        p = vk_sites(7, (7, 9))
        p.update({"e0": (2, 3), "bar": (2, 10), "d0": (2, 14), "d1": (3, 2), "d2": (3, 9), "d3": (3, 14), "e1": (4, 3),
                  "upk": (4, 9), "upv": (4, 9), "e2": (4, 14), "e3": (5, 2), "e4": (5, 10)})
        return p
    p = vk_sites(6)
    p["jr"] = (1, 7)
    if p_ == 1: p.update({"bar": (1, 15), "d0": (2, 3), "d1": (2, 8), "d2": (2, 13), "d3": (3, 1), "st0": (3, 8), "st1": (3, 13), "q0": (4, 1), "q1": (4, 9)})
    if p_ == 2: p.update({"st0": (1, 15), "bar": (2, 1), "d0": (2, 8), "d1": (2, 13), "d2": (3, 1), "d3": (3, 8), "st1": (3, 13), "q0": (4, 1), "q1": (4, 9)})
    if p_ == 3: p.update({"st0": (1, 15), "bar": (2, 5), "d0": (2, 9), "d1": (2, 13), "d2": (3, 1), "d3": (3, 8), "st1": (3, 13), "q0": (4, 1), "q1": (4, 9)})
    p.update({"upk": (4, 12, "x"), "upv": (4, 14, "x"), "ups": (4, 16, "x")})
    return p

def stamp():
    if not OPT["stamps"]: return []
    return [raw("s_memtime s[60:61]", "smem", (), regs("s[60:61]")), raw("s_memrealtime s[62:63]", "smem", (), regs("s[62:63]")),
            wait(lgkm=0), valu("v_mov_b32", "v252", "s60"), valu("v_mov_b32", "v253", "s62"), valu("v_mov_b32", "v254", 0),
            raw("s_mov_b64 exec, 1", "salu"),
            bstore("v[252:253]", "v254", "s[64:67]", "s68", op="buffer_store_dwordx2"),
            raw("s_mov_b64 exec, -1", "salu"), salu("s_add_u32", "s68", "s68", 8), nop(3)]
def stamp_init():
    if not OPT["stamps"]: return []
    return [raw("s_load_dwordx2 s[64:65], s[0:1], 40", "smem", (), regs("s[64:65]")), wait(lgkm=0),
            salu("s_mov_b32", "s66", 1 << 20), salu("s_mov_b32", "s67", "0x20000"),
            salu("s_lshl_b32", "s68", "s2", 2), salu("s_add_u32", "s68", "s68", sW), salu("s_lshl_b32", "s68", "s68", 8)] + stamp()
def dbg_begin():
    if not OPT.get("dbg"): return []
    return [raw("s_memtime s[70:71]", "smem", (), regs("s[70:71]")), raw("s_memrealtime s[72:73]", "smem", (), regs("s[72:73]")),
            raw("s_load_dwordx2 s[76:77], s[0:1], 32", "smem", (), regs("s[76:77]")), wait(lgkm=0),
            salu("s_mov_b32", "s78", 64), salu("s_mov_b32", "s79", "0x20000")] + ([
            salu("s_mov_b32", "s80", "s76"), salu("s_mov_b32", "s81", "s77"), salu("s_mov_b32", "s82", 256), salu("s_mov_b32", "s83", "0x20000"),
            salu("s_not_b32", "s61", "s72"), valu("v_mov_b32", "v252", "s61"), valu("v_mov_b32", "v254", 128), raw("s_mov_b64 exec, 1", "salu"),
            raw("buffer_atomic_umax v252, v254, s[80:83], 0 offen sc1"), raw("s_mov_b64 exec, -1", "salu")] if OPT.get("probe") == "abs" else [])
def dbg_end():
    if not OPT.get("dbg"): return []
    return [wait(vm=0), raw("s_memtime s[60:61]", "smem", (), regs("s[60:61]")), raw("s_memrealtime s[62:63]", "smem", (), regs("s[62:63]")),
            wait(lgkm=0), salu("s_sub_u32", "s60", "s60", "s70"), salu("s_sub_u32", "s62", "s62", "s72"),
            salu("s_lshl_b32", "s61", sW, 8), salu("s_add_u32", "s61", "s61", "s2"), salu("s_lshl_b32", "s61", "s61", 3),
            valu("v_mov_b32", "v252", "s60"), valu("v_mov_b32", "v253", "s62"), valu("v_mov_b32", "v254", "s61"),
            raw("s_mov_b64 exec, 1", "salu"),
            bstore("v[252:253]", "v254", "s[76:79]", 0, op="buffer_store_dwordx2"), raw("s_mov_b64 exec, -1", "salu")] + probe()
def probe():
    m = OPT.get("probe")
    if not m: return []
    tgt = {"fix": [salu("s_mov_b32", "s61", 15000)],
           "cyc": [salu("s_mul_hi_u32", "s61", "s60", "0x1999999a")],
           "dbl": [salu("s_lshl_b32", "s61", "s62", 1)],
           "abs": [valu("v_mov_b32", "v254", 128), valu("v_mov_b32", "v252", 0), raw("buffer_load_dword v252, v254, s[80:83], 0 offen sc0 sc1"), wait(vm=0),
                   valu("v_readfirstlane_b32", "s72", "v252"), nop(3), salu("s_not_b32", "s72", "s72"), salu("s_mov_b32", "s61", 15000)]}[m]
    return tgt + [label("L_probe"), raw("s_memrealtime s[62:63]", "smem", (), regs("s[62:63]")), wait(lgkm=0),
                  salu("s_sub_u32", "s62", "s62", "s72"), scmp("s_cmp_lt_u32", "s62", "s61"), branch("s_cbranch_scc1", "L_probe")]

def flat(gs): return [x for g in gs for x in g]
def spaced(seq):
    out = []
    for x in seq:
        if out and out[-1].kind == "trans" and x.kind == "valu" and out[-1].wr & x.rd: out.append(nop(0))
        out.append(x)
    return out
def weave(ms, fill, pres=()):
    out = []; fill = list(fill); pres = list(pres)
    for m_ in ms:
        out.append(m_)
        g = fill.pop(0) if fill else []
        if pres and (not g or g[0].kind in VAL): out.append(pres.pop(0))
        out += g
    return out + flat(fill) + pres
def pairs(seq): return [seq[i:i + 2] for i in range(0, len(seq), 2)]

def qaddr(ks): return v(vQa) if ks == 0 else v(vQx + ks - 1)
def oaddr(j): return v(vOw) if j == 0 else v(vOx + j - 1)
def qreads(t, slot=None, tag="q"):
    slot = t if slot is None else slot
    return ([need(tag, 4 * t + 4)] if t < 6 else []) + \
        [dsread("ds_read_b128", a(aQ + 16 * t + 4 * ks, 4), qaddr(ks), 4096 * slot) for ks in range(4)]
def q6bounce(slot): return [dswrite("ds_write_b128", v(vStb), a(aQ6n + 4 * n, 4), 4096 * slot + 1024 * n) for n in range(4)]
def q6loads(soff): return [bload(a(aQ + 96 + 4 * ks, 4), v(vQ6), SQ, soff, 64 * ks, OPT["q"]) for ks in range(4)]
def readback(slot, dst): return [dsread("ds_read_b128", v(dst + 4 * n, 4), v(vStb), 4096 * slot + 1024 * n) for n in range(4)]
def stores(src, soff): return [bstore(v(src + 4 * n, 4), v(vSw1 if n & 1 else vSw0), SO, soff, 1024 * n, OPT["o"]) for n in range(4)]

def flag(mask):
    return [salu("s_lshl_b32", sFlag, sFlag, 1), scmp("s_cmp_lg_u64", mask, 0), salu("s_addc_u32", sFlag, sFlag, 0)]
def l_own():
    r = lambda t: v(vRc + t)
    g = pairs([valu("v_accvgpr_read_b32", r(t), a(aL + 4 * t)) for t in range(6)])
    g += [[valu("v_max3_u32", v(vMx), r(0), r(1), r(2)), valu("v_min3_u32", v(vMn), r(0), r(1), r(2))],
          [valu("v_max3_u32", v(vMx), v(vMx), r(3), r(4)), valu("v_min3_u32", v(vMn), v(vMn), r(3), r(4))],
          [valu("v_max_u32", v(vMx), v(vMx), r(5)), valu("v_min_u32", v(vMn), v(vMn), r(5))],
          [valu("v_subrev_u32", v(vMx), sLo, v(vMx)), valu("v_subrev_u32", v(vMn), sLo, v(vMn))],
          [valu("v_max_u32", v(vMx), v(vMx), v(vMn)), valu("v_cmp_lt_u32", "vcc", sSpan, v(vMx))]]
    g += [[valu("v_rcp_f32", r(t), r(t))] for t in range(6)]
    return g, flag("vcc")
def l_six():
    r = v(vRc + 6)
    return [valu("v_subrev_u32", v(vMx), sLo, r), valu("v_cmp_lt_u32", "vcc", sSpan, v(vMx)), valu("v_rcp_f32", r, r), nop(1)] + flag("vcc")

def scale_pack(t, base, nblk):
    rp = v(vRc + (t & ~1), 2)
    mods = "op_sel_hi:[1,0]" if t % 2 == 0 else "op_sel:[0,1] op_sel_hi:[1,1]"
    o = [valu("v_pk_mul_f32", v(base + 2 * i, 2), v(base + 2 * i, 2), rp, mods=mods) for i in range(2 * nblk)]
    for b in range(nblk):
        o += [valu("v_cvt_pk_bf16_f32", v(base + 4 * b + i), v(base + 4 * b + 2 * i), v(base + 4 * b + 2 * i + 1)) for i in range(2)]
    return o
def epi(t, slot, tmp=None, side=()):
    o = []; side = list(side)
    for j0 in range(0, 8, 2):
        if t == 6:
            base = tmp + 4 * j0
            o += [valu("v_accvgpr_read_b32", v(base + i), a(aO6 + 4 * j0 + i)) for i in range(8)]
        else:
            base = 32 * t + 4 * j0
        o += scale_pack(t, base, 2)
        o += [dswrite("ds_write_b64", oaddr(j0 + b), v(base + 4 * b, 2), 4096 * slot) for b in range(2)]
        if side: o += side.pop(0)
    return o

def red_put():
    w = [dswrite("ds_write_b128", v(vStb), a(aO6 + 4 * j, 4), 1024 * j) for j in range(8)]
    pre_ = [valu("v_lshrrev_b32", v(vMn), 2, v(vLin)), valu("v_and_b32", v(vMx), 255, v(vMn)), valu("v_lshrrev_b32", v(vMn), 9, v(vMn)),
            valu("v_lshl_add_u32", v(vMn), v(vMn), 8, v(vMx)), valu("v_add_u32", v(vMn), LSUM, v(vMn)), valu("v_add_u32", v(vMx), LSUM, v(vMx)),
            dswrite("ds_write_b32", v(vMn), a(aL + 24), 0)]
    return pre_, pairs(w)
def red_get(tmp):
    o = [valu("v_add_u32", v(vMn), STG0, v(vLin)), valu("v_add_u32", v(vTMP + 4), STG0 + 2 * STGW, v(vLin))]
    for w in range(4):
        ad = v(vMn) if w < 2 else v(vTMP + 4)
        o += [dsread("ds_read_b128", v(tmp + 8 * w + 4 * b, 4), ad, (w & 1) * STGW + 1024 * b) for b in range(2)]
    o += [dsread("ds_read_b32", v(vTMP + w), v(vMx), 256 * w) for w in range(4)]
    return o
def red_fin(tmp, soff):
    o = [valu("v_add_f32", v(vTMP), v(vTMP), v(vTMP + 1)), valu("v_add_f32", v(vTMP + 2), v(vTMP + 2), v(vTMP + 3)),
         valu("v_add_f32", v(vRc + 6), v(vTMP), v(vTMP + 2))]
    o += l_six()
    for x, y in ((0, 1), (2, 3), (0, 2)):
        o += [valu("v_pk_add_f32", v(tmp + 8 * x + 2 * i, 2), v(tmp + 8 * x + 2 * i, 2), v(tmp + 8 * y + 2 * i, 2)) for i in range(4)]
    o += scale_pack(6, tmp, 2)
    o += [salu("s_lshl_b32", sT2, sW, 6), salu("s_add_u32", sT2, sT2, soff)]
    o += [bstore(v(tmp + 4 * b, 2), v(vFr), SO, sT2, 32 * b, OPT["o"], op="buffer_store_dwordx2") for b in range(2)]
    return o

def next_bases():
    return [salu("s_add_u32", sHead, sHead, HEAD_Q),
            salu("s_add_u32", sNx0, sHead, sE0), salu("s_add_u32", sNx6, sHead, sE6),
            salu("s_mov_b32", sT0, sE0), salu("s_mov_b32", sE0, sF0), salu("s_mov_b32", sF0, sT0),
            salu("s_mov_b32", sT0, sE6), salu("s_mov_b32", sE6, sF6), salu("s_mov_b32", sF6, sT0)]

def head0(role):
    g = softmax_groups()[:HEAD0]
    if role == "A": return spaced(flat(g)) + [salu("s_mov_b32", sCnt, 3), wait(lgkm=0)]
    z = v(vTMP + 4, 4)
    zs = [mfma(a(aO6 + 4 * j, 4), z, z, 0) for j in range(8)] + [mfma(a(aL + 24, 4), z, z, 0)]
    return [valu("v_mov_b32", v(vTMP + 4 + i), 0) for i in range(4)] + g[0] + weave(zs, g[1:], [salu("s_mov_b32", sCnt, 14)]) + [wait(lgkm=0)]
def enter_b():
    o = []
    for w in (1, 2, 3): o += [scmp("s_cmp_eq_u32", sW, w), branch("s_cbranch_scc1", f"L_fb{w}")]
    return o

def boundary(prev):
    ql = q6loads(sNx6)
    o = [wait(vm=8)] + [ql[0]] + qreads(0) + spaced(flat(softmax_groups()[HEADL:]))
    sal = [salu("s_mov_b32", "s18", QBYTES), salu("s_mov_b32", sO, sCur0), salu("s_mov_b32", sT1, sCur6),
           salu("s_mov_b32", sCur0, sNx0), salu("s_mov_b32", sCur6, sNx6)] + next_bases() + \
          [salu("s_mov_b32", sQ, sNx0), salu("s_mov_b32", sSM, sStg)]
    q1, q2 = qreads(1), qreads(2)
    o += [nop(1)] + weave([summ(5, False)] + [pv(5, j, False) for j in range(8)],
                          [q1[:3]] + [vread(j) for j in range(4)] + [q1[3:], q2[:3], q2[3:], [ql[1]]])
    o.append(wait(lgkm=14))
    ql = q6loads(sCur6)
    lg, fl = l_own()
    o += weave([qk(0, i) for i in range(8)], lg[:8], sal[:8])
    for g, s_ in zip(lg[8:], sal[8:14]): o += g + [s_]
    o += sal[14:] + fl + [valu("v_mov_b32", v(vSt), v(vStb)), ql[2]]
    dis = [scmp("s_cmp_eq_u32", sRound, 1), salu("s_cselect_b32", "s14", 0, "s14")]
    if prev == "A":
        o += [valu("v_accvgpr_read_b32", v(vRc + 6), a(aL + 24))] + l_six()
        o += epi(1, 1) + [ql[3]] + dis
        o += epi(6, 0, tmp=32) + readback(0, 32) + qreads(3)
        o += epi(2, 2)
        o += [wait(lgkm=8)] + epi(0, 0, side=[[x] for x in stores(32, sT1)]) + qreads(4)
        o += epi(3, 3) + [wait(vm=8)] + qreads(5) + epi(4, 4) + epi(5, 5)
    else:
        p0, pw = red_put()
        o += p0 + epi(2, 2, side=pw) + [ql[3]] + dis + qreads(3) + [wait(lgkm=4), barrier()] + red_get(64)
        o += epi(3, 3) + qreads(4) + [wait(lgkm=12), barrier()]
        o += red_fin(64, sT1)
        o += epi(0, 0) + epi(1, 1) + [wait(vm=6)] + qreads(5) + epi(4, 4) + epi(5, 5)
    o += [reset("q"), salu("s_mov_b64", "vcc", 0)]
    return o

def tail(prev):
    keep = OPT["o"]; OPT["o"] = OPT.get("ot", keep)
    o = tail_(prev); OPT["o"] = keep
    return o
def tail_(prev):
    o = spaced(flat(softmax_groups()[HEADL:])) + [salu("s_mov_b32", "s18", QBYTES), wait(vm=0)]
    lg, fl = l_own()
    o += [summ(5, False)] + [pv(5, j, False) for j in range(8)] + spaced(flat(lg)) + fl
    def st(t): return [[salu("s_add_u32", sT1, sCur0, 4096 * t)] + stores(32 * t, sT1)[:1]] + [[x] for x in stores(32 * t, sT1)[1:]]
    if prev == "A":
        o += [valu("v_accvgpr_read_b32", v(vRc + 6), a(aL + 24))] + l_six()
        o += epi(1, 1) + readback(1, 32) + epi(0, 0) + readback(0, 0)
        seq = [1, 0, 2, 3, 4, 5]
        for i in range(2, 6): o += [wait(lgkm=12)] + epi(seq[i], seq[i], side=st(seq[i - 2])) + readback(seq[i], 32 * seq[i])
        o += [wait(lgkm=12)] + epi(6, 0, tmp=32, side=st(4)) + readback(0, 32)
        o += [wait(lgkm=12)] + flat(st(5)) + [wait(lgkm=0)] + stores(32, sCur6)
    else:
        p0, pw = red_put()
        o += p0 + epi(2, 2, side=pw) + readback(2, 64) + [wait(lgkm=4), barrier()]
        o += epi(3, 3) + readback(3, 96) + [wait(lgkm=12)] + epi(4, 4, side=st(2)) + red_get(64) + [wait(lgkm=12)]
        o += flat(st(3)) + readback(4, 128) + [wait(lgkm=4), barrier()]
        o += red_fin(64, sCur6)
        o += [wait(lgkm=0)] + epi(5, 5, side=st(4)) + readback(5, 160) + epi(0, 0) + readback(0, 0)
        o += [wait(lgkm=12)] + epi(1, 1, side=st(5)) + readback(1, 32) + [wait(lgkm=12)] + flat(st(0)) + [wait(lgkm=0)] + flat(st(1))
    return o

def role_bases():
    return [salu("s_mul_i32", sE0, sW, 7 * 4096), salu("s_add_u32", sE6, sE0, 6 * 4096),
            salu("s_mul_i32", sF0, sW, 6 * 4096), salu("s_add_u32", sF0, sF0, 448 * 256), salu("s_mov_b32", sF6, 832 * 256),
            scmp("s_cmp_eq_u32", sRole, 0),
            salu("s_cselect_b32", sT0, sE0, sF0), salu("s_cselect_b32", sF0, sF0, sE0), salu("s_mov_b32", sE0, sT0),
            salu("s_cselect_b32", sT0, sE6, sF6), salu("s_cselect_b32", sF6, sF6, sE6), salu("s_mov_b32", sE6, sT0),
            salu("s_mul_i32", sHead, sPair, 4 * HEAD_Q), salu("s_sub_u32", sHead, sHead, HEAD_Q)]

def prologue():
    c = math.log2(math.e) / math.sqrt(128.0)
    L, G, Rw, X, Y, Z = (vTMP + i for i in range(6))
    o = [scmp("s_cmp_ge_u32", "s2", 256), branch("s_cbranch_scc1", "L_end")] + dbg_begin()
    o += [raw("s_load_dwordx4 s[20:23], s[0:1], 0", "smem", (), regs("s[20:23]")),
          raw("s_load_dwordx4 s[24:27], s[0:1], 16", "smem", (), regs("s[24:27]")),
          valu("v_lshrrev_b32", v(X), 6, "v0"), valu("v_and_b32", v(L), 63, "v0"),
          valu("v_readfirstlane_b32", sW, v(X)),
          valu("v_lshrrev_b32", v(G), 4, v(L)), valu("v_and_b32", v(Rw), 15, v(L)),
          salu("s_lshr_b32", sT0, "s2", 4), salu("s_lshl_b32", sT0, sT0, 3), salu("s_and_b32", sT1, "s2", 7),
          salu("s_add_u32", sPair, sT0, sT1), salu("s_bfe_u32", sRole, "s2", "0x10003")]
    rot = OPT.get("rot", "0")
    if rot == "0": o += [salu("s_mov_b32", sRot, 0)]
    elif rot == "lo": o += [salu("s_and_b32", sRot, sPair, 15), salu("s_lshl_b32", sRot, sRot, 13)]
    elif rot == "hi": o += [salu("s_lshr_b32", sRot, sPair, 3), salu("s_lshl_b32", sRot, sRot, 13)]
    elif rot == "mix": o += [salu("s_lshr_b32", sRot, sPair, 3), salu("s_lshl_b32", sT0, sPair, 1), salu("s_xor_b32", sRot, sRot, sT0),
                             salu("s_and_b32", sRot, sRot, 15), salu("s_lshl_b32", sRot, sRot, 13)]
    if OPT.get("adj"): o += [salu("s_lshr_b32", sPair, "s2", 1), salu("s_and_b32", sRole, "s2", 1)]
    o += [
          salu("s_mul_i32", sW2112, sW, 2 * PITCH), salu("s_add_u32", sTop, sW2112, (NR - 1) * SLOT),
          salu("s_mul_i32", sStg, sW, STGW), salu("s_add_u32", sStg, sStg, STG0)]
    o += role_bases()
    o += next_bases() + [salu("s_mov_b32", sCur0, sNx0), salu("s_mov_b32", sCur6, sNx6)] + next_bases()
    o += [comment("vLin = lane*16 + wave*2048, vStb = lane*16 + staging base"),
          valu("v_lshlrev_b32", v(Y), 4, v(L)), valu("v_add_u32", v(vStb), sStg, v(Y)),
          valu("v_lshl_add_u32", v(vLin), v(X), 11, v(Y)),
          comment("vSw0/1 = g*256 + ((lane&15) ^ s(rho))*16, rho = g (+4), s(rho) = rho | (rho&1)<<3"),
          valu("v_and_b32", v(Y), 1, v(G)), valu("v_lshl_add_u32", v(Y), v(Y), 3, v(G)),
          valu("v_xor_b32", v(Y), v(Y), v(Rw)), valu("v_lshlrev_b32", v(Y), 4, v(Y)),
          valu("v_lshl_add_u32", v(vSw0), v(G), 8, v(Y)), valu("v_xor_b32", v(vSw1), 64, v(vSw0)),
          valu("v_lshlrev_b32", v(Y), 4, v(G)), valu("v_lshl_add_u32", v(vQ6), v(Rw), 8, v(Y))]
    o += [wait(lgkm=0),
          salu("s_lshl_b32", sT0, sPair, 19),
          salu("s_add_u32", "s4", "s22", sT0), salu("s_addc_u32", "s5", "s23", 0), salu("s_mov_b32", "s6", 4 * HEAD_KV), salu("s_mov_b32", "s7", "0x20000"),
          salu("s_add_u32", "s8", "s24", sT0), salu("s_addc_u32", "s9", "s25", 0), salu("s_mov_b32", "s10", 4 * HEAD_KV), salu("s_mov_b32", "s11", "0x20000"),
          salu("s_mov_b32", "s12", "s20"), salu("s_mov_b32", "s13", "s21"), salu("s_mov_b32", "s14", QBYTES), salu("s_mov_b32", "s15", "0x20000"),
          salu("s_mov_b32", "s16", "s26"), salu("s_mov_b32", "s17", "s27"), salu("s_mov_b32", "s18", 0), salu("s_mov_b32", "s19", "0x20000")]
    o += stamp_init()
    o += pro_load(PRO[0])
    for i in range(int(OPT.get("stag", 0))):
        o += [scmp("s_cmp_eq_u32", sRole, 0), branch("s_cbranch_scc1", f"L_go{i}"), I("s_waitcnt vmcnt(0)", "other")]
        if i + 1 < int(OPT["stag"]): o += [I(x.text, "other") for x in pro_load(f"KV{i + 1}")]
        o += [label(f"L_go{i}")]
    for x in PRO[1:3]: o += pro_load(x)
    o += [comment("staging: Q fragment row*256 + (g ^ s)*16, O write row*256 + ((g>>1) ^ s)*16 + (g&1)*8; vFr = row*256 + g*8"),
          valu("v_and_b32", v(Y), 1, v(Rw)), valu("v_and_b32", v(Z), 7, v(Rw)), valu("v_lshl_add_u32", v(Y), v(Y), 3, v(Z)),
          valu("v_lshlrev_b32", v(Z), 8, v(Rw)), valu("v_lshl_add_u32", v(vFr), v(G), 3, v(Z)), valu("v_add_u32", v(Z), sStg, v(Z)),
          valu("v_xor_b32", v(X), v(Y), v(G)), valu("v_lshl_add_u32", v(vQa), v(X), 4, v(Z)),
          valu("v_lshrrev_b32", v(X), 1, v(G)), valu("v_xor_b32", v(X), v(Y), v(X)), valu("v_lshl_add_u32", v(vOw), v(X), 4, v(Z)),
          valu("v_and_b32", v(X), 1, v(G)), valu("v_lshl_add_u32", v(vOw), v(X), 3, v(vOw)),
          comment("ring: K piece row&7, line row>>3, chunk g; V piece (lane>>2)&7, line lane>>5, 8-byte chunk lane&3"),
          salu("s_mov_b32", sT0, PITCH),
          valu("v_and_b32", v(X), 7, v(Rw)), valu("v_mul_lo_u32", v(X), v(X), sT0),
          valu("v_lshrrev_b32", v(Y), 3, v(Rw)), valu("v_lshl_add_u32", v(X), v(Y), 8, v(X)),
          valu("v_lshl_add_u32", v(X), v(G), 4, v(X)), valu("v_subrev_u32", v(vKb), sW2112, v(X)),
          valu("v_bfe_u32", v(X), v(L), 2, 3), valu("v_mul_lo_u32", v(X), v(X), sT0),
          valu("v_lshrrev_b32", v(Y), 5, v(L)), valu("v_lshl_add_u32", v(X), v(Y), 8, v(X)),
          valu("v_and_b32", v(Y), 3, v(L)), valu("v_lshl_add_u32", v(X), v(Y), 3, v(X)),
          valu("v_subrev_u32", v(vVb), sW2112, v(X)),
          valu("v_add_u32", v(vK), sTop, v(vKb)), valu("v_add_u32", v(vV), sTop, v(vVb)),
          comment("row-sum operand: ones in rows 0,4,8,12"),
          valu("v_mov_b32", v(X), "0x3f803f80"), valu("v_cmp_eq_u32", "vcc", 0, v(Y)), nop(1),
          valu("v_cndmask_b32", v(X), 0, v(X), "vcc")]
    o += [valu("v_accvgpr_write_b32", a(aONE + i), v(X)) for i in range(4)]
    o += [salu("s_mov_b32", sC, hex(fbits(c))), salu("s_mov_b32", sRd, sTop),
          salu("s_mov_b32", sQ, sNx0), salu("s_mov_b32", sO, 0), salu("s_mov_b32", sSM, sStg),
          salu("s_mov_b32", sRound, 4), salu("s_mov_b32", sFlag, 0),
          salu("s_mov_b32", sLo, hex(L_LO)), salu("s_mov_b32", sSpan, hex(L_HI - L_LO)),
          valu("v_mov_b32", v(vSt), v(vStb))]
    o += [valu("v_xor_b32", v(vQx + ks - 1), 64 * ks, v(vQa)) for ks in (1, 2, 3)]
    o += [valu("v_xor_b32", v(vOx + j - 1), 32 * j, v(vOw)) for j in range(1, 8)]
    o += [salu("s_mov_b32", sKV, "0x40000000"), salu("s_mov_b32", sLinKV, "0x40000000"), salu("s_mov_b32", sQ, "0x40000000")]
    o += pro_load(PRO[3])
    o += [salu("s_mov_b64", "vcc", -1), wait(vm=8), need("kv", 4), barrier()]
    o += [kread(i) for i in range(8)] + qreads(0, tag="q0") + pro_load(PRO[4]) + [wait(lgkm=0)]
    o += weave([qk(0, i) for i in range(8)], [vread(j) for j in range(4)])
    o += [wait(vm=8)] + qreads(1, tag="q0")
    return o

def slow():
    Q, S, P, O, K, V, Lr = 0, 16, 24, 32, 64, 96, 128
    M, M2, AK, AV, AL, AQ = 132, 133, 134, 135, 136, 137
    o = [label("L_slow"), wait(vm=0, lgkm=0), salu("s_mov_b32", "s14", QBYTES)] + role_bases()
    o += [salu("s_add_u32", sT0, sStg, sW2112), valu("v_add_u32", v(AK), sT0, v(vKb)), valu("v_add_u32", v(AV), sT0, v(vVb)),
          valu("v_and_b32", v(AL), 1023, v(vLin)), valu("v_mov_b32", v(AQ), v(vQ6)),
          salu("s_mov_b32", sRound, 0),
          label("L_sround")] + next_bases() + [salu("s_mov_b32", sI, 0),
          label("L_ssub"),
          scmp("s_cmp_eq_u32", sI, 6), salu("s_cselect_b32", sT1, 6, 7), salu("s_lshl_b32", sT0, sRound, 1), salu("s_sub_u32", sT1, sT1, sT0),
          scmp("s_bitcmp1_b32", sFlag, sT1), branch("s_cbranch_scc0", "L_snext"),
          salu("s_lshl_b32", sT0, sI, 12), salu("s_add_u32", sO, sNx0, sT0), scmp("s_cmp_eq_u32", sI, 6), salu("s_cselect_b32", sO, sNx6, sO)]
    o += [bload(v(Q + 4 * ks, 4), v(AQ), SQ, sO, 64 * ks) for ks in range(4)]
    def fetch(srd, off):
        r = []
        for n in range(8):
            r += [salu("s_add_u32", "m0", sStg, off + PITCH * n), salu("s_add_u32", sT0, sKV, 1024 * n), dma(v(AL), srd, sT0)]
        return r
    kr = [dsread("ds_read_b128", v(K + 4 * i, 4), v(AK), (i >> 2) * 512 + (i & 3) * 64) for i in range(8)]
    qks = [mfma(v(S + 4 * (i >> 2), 4), v(K + 4 * i, 4), v(Q + 4 * (i & 3), 4), 0 if i & 3 == 0 else v(S + 4 * (i >> 2), 4)) for i in range(8)]
    loop = lambda lab: [salu("s_add_u32", sKV, sKV, 8192), salu("s_add_u32", sJ, sJ, 1), scmp("s_cmp_lt_u32", sJ, 16), branch("s_cbranch_scc1", lab)]
    start = [salu("s_lshl_b32", sKV, sRound, 17), salu("s_mov_b32", sJ, 0)]
    o += [valu("v_mov_b32", v(M), "0xff800000")] + start + [label("L_smax")]
    o += fetch(SK, 0) + [wait(vm=0)] + kr + [wait(lgkm=0)] + qks + [nop(8)]
    o += [valu("v_max3_f32", v(M), v(M), v(S + 2 * i), v(S + 2 * i + 1)) for i in range(4)] + loop("L_smax")
    for sw in ("v_permlane32_swap_b32", "v_permlane16_swap_b32"):
        o += [valu("v_mov_b32", v(M2), v(M)), nop(1), I(f"{sw} v{M}, v{M2}", "valu", [f"v{M}", f"v{M2}"], [f"v{M}", f"v{M2}"]), nop(1),
              valu("v_max_f32", v(M), v(M), v(M2))]
    o += [valu("v_mov_b32", v(O + i), 0) for i in range(32)] + [valu("v_mov_b32", v(Lr + i), 0) for i in range(4)]
    o += start + [label("L_spv")]
    o += fetch(SK, 0) + fetch(SV, BLK) + [wait(vm=0)] + kr + [wait(lgkm=0)]
    o += [dsread("ds_read_b64_tr_b16", v(V + 4 * j + 2 * hb, 2), v(AV), BLK + hb * 512 + j * 32) for j in range(8) for hb in (0, 1)]
    o += qks + [nop(8)]
    o += [valu("v_sub_f32", v(S + i), v(S + i), v(M)) for i in range(8)] + [valu("v_mul_f32", v(S + i), sC, v(S + i)) for i in range(8)]
    o += [valu("v_exp_f32", v(S + i), v(S + i)) for i in range(8)] + [nop(0)]
    o += [valu("v_cvt_pk_bf16_f32", v(P + i), v(S + 2 * i), v(S + 2 * i + 1)) for i in range(4)] + [wait(lgkm=0), nop(1)]
    o += [mfma(v(Lr, 4), a(aONE, 4), v(P, 4), v(Lr, 4))] + [mfma(v(O + 4 * j, 4), v(V + 4 * j, 4), v(P, 4), v(O + 4 * j, 4)) for j in range(8)]
    o += loop("L_spv") + [nop(8), valu("v_rcp_f32", v(Lr), v(Lr)), nop(0)]
    o += [valu("v_mul_f32", v(O + i), v(O + i), v(Lr)) for i in range(32)]
    for j in range(8):
        o += [valu("v_cvt_pk_bf16_f32", v(O + 4 * j + i), v(O + 4 * j + 2 * i), v(O + 4 * j + 2 * i + 1)) for i in range(2)]
    o += [bstore(v(O + 4 * j, 2), v(vFr), SO, sO, 32 * j, op="buffer_store_dwordx2") for j in range(8)] + [wait(vm=0)]
    o += [label("L_snext"), salu("s_add_u32", sI, sI, 1), scmp("s_cmp_lt_u32", sI, 7), branch("s_cbranch_scc1", "L_ssub"),
          salu("s_add_u32", sRound, sRound, 1), scmp("s_cmp_lt_u32", sRound, 4), branch("s_cbranch_scc1", "L_sround")]
    return o

def build():
    VA = {p: 40 for p in range(4)}
    FA = step(ORDER7, True, plan_a(True), 2)
    PA = {p: step(ORDER7, False, plan_a(p != 3), VA[p], "L_exitA" if p == 3 else None) for p in range(4)}
    VB = {p: 40 for p in range(4)}; VFB = {0: 4, 1: 8, 2: 9, 3: 9}
    ordb = lambda p: ORDER7 if p == 0 else ORDER6
    FB = {p: step(ordb(p), True, plan_b(p), VFB[p], zero6=False) for p in range(4)}
    PB = {p: step(ordb(p), False, plan_b(p), VB[p], "L_exitB") for p in range(4)}
    if OPT.get("verbose"):
        print("A steps", [PA[p][3] for p in range(4)], file=sys.stderr)
        print("B steps", [PB[p][3] for p in range(4)], "barrier intervals", [PB[p][3] - PB[p][2] + PB[(p + 1) % 4][2] for p in range(4)], file=sys.stderr)
    both = lambda s_: s_[0] + s_[1]
    jump = lambda l: [branch("s_branch", l)]
    pro = prologue()
    sel = [scmp("s_cmp_eq_u32", sRole, 0), branch("s_cbranch_scc1", "L_headA"), branch("s_branch", "L_headB")]
    ex = lambda r: stamp() + [salu("s_sub_u32", sRound, sRound, 1), scmp("s_cmp_eq_u32", sRound, 0), branch("s_cbranch_scc1", f"L_tail{r}")]
    exA, exB, bA, bB, hA, hB, tA, tB = ex("A"), ex("B"), boundary("A"), boundary("B"), head0("A") + stamp(), head0("B") + stamp(), tail("A"), tail("B")
    fin = stamp() + ([wait(vm=0)] + stamp() if OPT["stamps"] else []) + dbg_end() + \
        [scmp("s_cmp_eq_u32", sFlag, 0), branch("s_cbranch_scc1", "L_end")]
    sl = slow()
    prog = pro + sel
    prog += [label("L_exitB")] + exB + bB + [label("L_headA")] + hA + both(FA)
    prog += [label("L_pa1")] + both(PA[1]) + both(PA[2]) + both(PA[3]) + both(PA[0]) + jump("L_pa1")
    prog += [label("L_exitA")] + exA + bA + [label("L_headB")] + hB + enter_b() + both(FB[0])
    prog += [label("L_pb1")] + both(PB[1]) + [label("L_pb2")] + both(PB[2]) + [label("L_pb3")] + both(PB[3]) + [label("L_pb0")] + both(PB[0]) + jump("L_pb1")
    for w in (1, 2, 3): prog += [label(f"L_fb{w}")] + both(FB[w]) + jump(f"L_pb{(w + 1) % 4}")
    prog += [label("L_tailB")] + tB + jump("L_fin") + [label("L_tailA")] + tA + [label("L_fin")] + fin + sl + [label("L_end"), raw("s_endpgm")]
    prog, far = expand(prog, "emit")
    k = next(i for i, x in enumerate(prog) if x.text == "L_exitB:")
    prog = prog[:k] + far + prog[k:]
    paths = []
    for w in range(4):
        ra = hA + both(FA) + flat(both(PA[j % 4]) for j in range(1, 15)) + PA[3][0] + exA
        rb = hB + enter_b() + both(FB[w]) + flat(both(PB[(w + j) % 4]) for j in range(1, 15)) + PB[(w + 15) % 4][0] + exB
        paths.append((pro + sel + expand(ra, "on") + expand(bA + rb + bB + ra + bA + rb + tB + fin, "off"), f"AB w{w}"))
        paths.append((pro + sel + expand(rb, "on") + expand(bB + ra + bA + rb + bB + ra + tA + fin, "off"), f"BA w{w}"))
    while any([tighten(p) for p, _ in paths]): pass
    if OPT.get("verbose"): print("barrier waits", [x.info[0] for x in prog if isinstance(x, AutoWait)], file=sys.stderr)
    errs = check(sl, "slow")
    for p, nm in paths: errs += check(p, nm)
    errs = list(dict.fromkeys(errs))
    for e in errs[:40]: print("CHECK:", e, file=sys.stderr)
    return prog, errs

HEADER = """; Attention forward, B=16 H=32 Sq=848 Sk=512 D=128, bf16 (written by the generator gen/gen.py).
; One workgroup per CU, four heads per pair of workgroups. Per head one workgroup takes rows 0..447 (round A: 7 x 16 rows
; per wave), the other rows 448..847 (round B: 6 x 16 rows per wave, the last 16 rows split over the waves by key block).
; S^T = K Q^T and O^T = V^T P^T with 16x16x32 MFMA; K/V stream through an LDS ring, Q/O through per-wave LDS staging.
; exp2 runs without max subtraction; every row sum is range-checked and rows outside [2^-24, 2^40] are recomputed
; with the true row max (L_slow).
; @launch grid=(256,1,1) block=(256,1,1) lds=%d
.amdgcn_target "amdgcn-amd-amdhsa--gfx950"
.text
.globl %s
.p2align 8
.type %s,@function
%s:
"""
FOOTER = """.section .rodata,"a"
.p2align 6
.amdhsa_kernel %s
  .amdhsa_next_free_vgpr 512
  .amdhsa_next_free_sgpr 96
  .amdhsa_accum_offset 256
  .amdhsa_group_segment_fixed_size 0
  .amdhsa_kernarg_size 48
  .amdhsa_user_sgpr_count 2
  .amdhsa_user_sgpr_kernarg_segment_ptr 1
  .amdhsa_system_sgpr_workgroup_id_x 1
  .amdhsa_float_denorm_mode_32 3
.end_amdhsa_kernel
"""

def emit(path):
    prog, errs = build()
    with open(path, "w") as f:
        f.write(HEADER % (LDS, KNAME, KNAME, KNAME))
        for x in prog:
            if x.text: f.write(("" if x.text.endswith(":") else "    ") + x.text + "\n")
        f.write(FOOTER % KNAME)
    return errs

if __name__ == "__main__":
    out = sys.argv[1]
    for kv in sys.argv[2:]:
        k, val = kv.split("=")
        OPT[k] = val.replace("+", " ")
    sys.exit(1 if emit(out) else 0)
```

```python
import sys, struct, math
from asmlib import *

KNAME = "standalone__gqa_softmax__near_ridge_kernel"
OPT = dict(kv="", q="nt", o="sc1", ot="nt", rot="mix", stamps=False)

HEAD_Q = 848 * 256
HEAD_KV = 512 * 256
QBYTES = 512 * HEAD_Q
PITCH = 1056
BLK = 8 * PITCH
SLOT = 2 * BLK
import os
NR = int(os.environ.get("NR", 3))
STG0 = NR * SLOT
STGW = (6 if NR == 3 else 5) * 4096
LSUM = STG0 + 4 * STGW
LDS = LSUM + 1024
ORDER7 = [0, 1, 2, 6, 3, 4, 5]
ORDER6 = [0, 1, 2, 3, 4, 5]

vS, vT, vP = 192, 200, 208
vK, vV, vKb, vVb, vSt, vLin, vSw0, vSw1, vQa, vOw, vFr, vStb = range(212, 224)
vTMP = 224
vQx = 232
vOx = 235
vRc = 242
vMx, vMn, vPf, vQ6 = 250, 251, 252, 255
aQ, aQ6n, aK, aV, aL, aONE, aO6 = 0, 112, 128, 160, 192, 220, 224
SK, SV, SQ, SO = "s[4:7]", "s[8:11]", "s[12:15]", "s[16:19]"
(sW, sC, sRd, sTop, sW2112, sKV, sQ, sO, sSM, sCnt, sRound, sCur0, sCur6, sNx0, sNx6,
 sE0, sE6, sF0, sF6, sHead, sFlag, sStg, sT0, sT1, sT2, sLo, sSpan, sPair, sRole, sI, sJ) = [f"s{i}" for i in range(28, 59)]
sLinKV, sRot = "s59", "s3"

def v(i, n=1): return R("v", i, n)
def a(i, n=1): return R("a", i, n)
def Oreg(t, j): return a(aO6 + 4 * j, 4) if t == 6 else v(32 * t + 4 * j, 4)
def fbits(x): return struct.unpack("<I", struct.pack("<f", x))[0]
L_LO, L_HI = fbits(2.0 ** -24), fbits(2.0 ** 40)

def qk(t, i):
    hb, ks = i >> 2, i & 3
    d = v(vS + 4 * hb, 4)
    return mfma(d, a(aK + 4 * i, 4), a(aQ + 16 * t + 4 * ks, 4), 0 if ks == 0 else d)
def pv(t, j, first):
    d = Oreg(t, j)
    return mfma(d, a(aV + 4 * j, 4), v(vP, 4), 0 if first else d)
def summ(t, first):
    d = a(aL + 4 * t, 4)
    return mfma(d, a(aONE, 4), v(vP, 4), 0 if first else d)

def softmax_groups():
    m = lambda i: valu("v_mul_f32", v(vT + i), sC, v(vS + i))
    e = lambda i: valu("v_exp_f32", v(vT + i), v(vT + i))
    c = lambda i: valu("v_cvt_pk_bf16_f32", v(vP + i), v(vT + 2 * i), v(vT + 2 * i + 1))
    return [[m(0), m(1)], [e(0)], [e(1)], [m(2), m(3)], [e(2)], [m(4), m(5)], [e(3)], [m(6), m(7)],
            [e(4)], [e(5)], [c(0), c(1)], [e(6)], [e(7)], [c(2), c(3)]]
HEAD0, HEADL = 8, 7

def kread(i): return dsread("ds_read_b128", a(aK + 4 * i, 4), v(vK), (i >> 2) * 512 + (i & 3) * 64)
def vread(j): return [dsread("ds_read_b64_tr_b16", a(aV + 4 * j + 2 * hb, 2), v(vV), BLK + hb * 512 + j * 32) for hb in (0, 1)]

def code_touch():
    if OPT.get("pf", "1") == "0": return []
    return [I(f"global_load_dword a112, {v(vPf, 2)}, off", "vld", regs(v(vPf, 2)), (), info="pf")]

def gap_cost(ins):
    t = 4; prev = "mfma"
    for x in ins:
        k = x.kind
        if k in ("label", "need", "reset"): continue
        if k in VAL:
            if prev == "ds": t += 4
            t = max(t, 8) + (8 if k == "trans" else 4); prev = "valu"
        elif k == "dsr":
            if prev == "valu": t += 4
            t += 4; prev = "ds"
        else:
            if prev == "ds": t += 4
            t += {"dma": 12, "vld": 12, "vst": 24, "barrier": 13, "branch": 8}.get(k, 4); prev = k
    if prev == "ds": t += 4
    return max(16, t)

class Stub(I):
    __slots__ = ("code", "skip", "name")
    n = 0
    def __init__(self, code, skip=()):
        Stub.n += 1
        self.name = f"L_stub{Stub.n}"; self.code = code; self.skip = list(skip)
        I.__init__(self, f"s_cbranch_vccnz {self.name}", "branch")
def expand(seq, mode):
    out = []; far = []
    for x in seq:
        if x.kind == "dma" and str(x.info).endswith("?") and mode == "off":
            x = I(x.text, x.kind, x.rd, x.wr, info=x.info[:-1])
        if not isinstance(x, Stub): out.append(x); continue
        br = I(x.text, "branch")
        if mode == "emit":
            out += [br] + x.skip + [label(x.name + "r")]
            far += [label(x.name)] + x.code + [branch("s_branch", x.name + "r")]
        elif mode == "on": out += [br] + x.code + [I("s_branch", "branch")]
        else: out += [br] + x.skip
    return (out, far) if mode == "emit" else out

def step(order, first, plan, vmN, exit_label=None, zero6=True):
    n = len(order); NG = 17 * n
    at = lambda k, g: 17 * ((k - 1) % n) + g
    kvf, qf, of = OPT["kv"], OPT["q"], OPT["o"]
    job = "st0" in plan
    ops = {
        "bar": [autowait(vmN), need("kv", "step"), barrier()],
        "d0": [dma(v(vLin), SK, sKV, 0, kvf, "kv")], "d1": [dma(v(vLin), SK, sKV, 1024, kvf, "kv")],
        "d2": [dma(v(vLin), SV, sKV, 0, kvf, "kv")], "d3": [dma(v(vLin), SV, sKV, 1024, kvf, "kv")],
        "jr": [dsread("ds_read_b128", v(vTMP, 4), v(vSt), 0), dsread("ds_read_b128", v(vTMP + 4, 4), v(vSt), 1024)],
        "st0": [bstore(v(vTMP, 4), v(vSw0), SO, sO, 0, of)], "st1": [bstore(v(vTMP + 4, 4), v(vSw1), SO, sO, 1024, of)],
        "q0": [dma(v(vSw0), SQ, sQ, 0, qf, "q")], "q1": [dma(v(vSw1), SQ, sQ, 1024, qf, "q")],
        "upk": [valu("v_add_u32", v(vK), sRd, v(vKb))], "upv": [valu("v_add_u32", v(vV), sRd, v(vVb))],
        "ups": [valu("v_add_u32", v(vSt), 2048, v(vSt))],
        "last": [branch("s_cbranch_scc1", exit_label)] if exit_label else [],
        "pf": code_touch(),
    }
    for j in range(8): ops[f"v{j}"] = vread(j); ops[f"k{j}"] = [kread(j)]
    body = [[] for _ in range(NG)]; pre = [[] for _ in range(NG)]
    free = set(); extra = []; idx = {}
    for name, pos in plan.items():
        i = at(pos[0], pos[1]); idx[name] = i
        if len(pos) > 2: extra.append((i, ops[name]))
        else: free.add(i); body[i] += ops.get(name, [])
    for k in range(n):
        gaps = [at(k, g) for g in range(7, 17)] + [at(k + 1, g) for g in range(7)]
        nf = [sum(i in free for i in gaps[:10]), sum(i in free for i in gaps[10:])]
        assert sum(nf) == 3, (k, nf)
        if k == 0: assert 10 - nf[0] == HEAD0
        if k == n - 1: assert 10 - nf[0] == HEADL
        gs = softmax_groups()
        for i in gaps:
            if i not in free: body[i] += gs.pop(0)
    for i, ins in extra: body[i] += ins
    ms = [None] * NG
    for k in range(n):
        t, tp = order[k], order[k - 1]
        z = first and (tp != 6 or zero6)
        pvs = [pv(tp, j, z) for j in range(8)]
        seq = [qk(t, i) for i in range(8)] + ((pvs + [summ(tp, z)]) if k == 0 else ([summ(tp, z)] + pvs))
        for g in range(17): ms[at(k, g)] = seq[g]
    def can(i): return not pre[i] and (not body[i] or body[i][0].kind in VAL)
    def place(ins, lo, hi, latest=True):
        cand = [i for i in range(lo, hi) if can(i)]
        assert cand, (ins.text, lo, hi)
        i = cand[-1] if latest else cand[0]
        pre[i].append(ins); return i
    pend = [(-7, x) for j in range(4) for x in vread(j)]
    waits = []
    for i in range(NG):
        cons = [(ms[i], i)] + [(x, i) for x in body[i] if x.kind == "vst"]
        for y, _ in cons:
            hit = [p for p, (gi, x) in enumerate(pend) if x.wr & (y.rd | y.rdC)]
            if not hit: continue
            p = max(hit)
            cand = [h for h in range(max(pend[p][0] + 1, 0), i) if can(h)]
            assert cand, (y.text, i)
            h = cand[-1]
            while p + 1 < len(pend) and pend[p + 1][0] <= h - 6: p += 1
            pre[h].append(wait(lgkm=sum(1 for gi, x in pend[p + 1:] if gi < h)))
            pend = pend[p + 1:]
        pend += [(i, x) for x in body[i] if x.kind == "dsr"]
    m0 = {"d0": salu("s_mov_b32", "m0", sRd), "d1": salu("s_add_u32", "m0", sRd, 32),
          "d2": salu("s_add_u32", "m0", sRd, BLK), "d3": salu("s_add_u32", "m0", sRd, BLK + 32),
          "q0": salu("s_mov_b32", "m0", sSM), "q1": salu("s_mov_b32", "m0", sSM)}
    dm = sorted((idx[nm], nm) for nm in m0 if nm in idx)
    prev = (-1, None); m0pos = {}
    for i, nm in dm:
        if not (nm == "q1" and prev[1] == "q0"): m0pos[nm] = place(m0[nm], prev[0] + 1, i)
        prev = (i, nm)
    assert idx["bar"] < min(idx[d] for d in ("d0", "d1", "d2", "d3"))
    assert idx["bar"] > at(1, 14)
    lastd = max(idx[d] for d in ("d0", "d1", "d2", "d3"))
    up = min(idx["upk"], idx["upv"])
    cand = [i for i in range(max(m0pos[d] for d in ("d0", "d1", "d2", "d3")) + 1, up) if can(i)]
    pair = [(x, y) for x, y in zip(cand, cand[1:]) if all(not pre[z] or pre[z][0].kind == "wait" or pre[z][0].text.startswith("s_mov") for z in range(x, y))]
    x, y = pair[0]
    pre[x].append(salu("s_sub_u32", sRd, sRd, SLOT)); pre[y].append(salu("s_cselect_b32", sRd, sTop, sRd))
    lo = max(y, lastd) + 1
    hi = idx["last"]
    if exit_label: hi = place(salu("s_sub_u32", sCnt, sCnt, 1), lo, hi)
    i1 = place(salu("s_add_u32", sLinKV, sLinKV, 8192), lo, hi, False)
    place(salu("s_xor_b32", sKV, sLinKV, sRot), i1 + 1, hi, False)
    if job:
        place(salu("s_add_u32", sO, sO, 2048), max(lo, idx["st1"] + 1), hi, False)
        place(salu("s_add_u32", sQ, sQ, 2048), max(lo, idx["q1"] + 1), hi, False)
        place(salu("s_add_u32", sSM, sSM, 2048), max(lo, idx["q1"] + 1), hi, False)
        assert idx["jr"] < idx["ups"] and idx["st0"] < idx["q0"] and idx["jr"] < idx["st0"]
    assert idx["upv"] > idx["v7"] and idx["upk"] < idx["k0"]
    if first:
        todo = [f"Q{t_}" for t_ in order[3:]] + ["KV2"] + ([] if n == 7 else ["Q6"])
        for h in range(NG):
            for z in body[h]:
                if z.kind == "dma": z.info += "?"
        hist = list(PRO)
        sites = []
        for k in range(1, n - 1):
            i = at(k, 12)
            while not can(i) or x < i <= y: i -= 1
            sites.append((i, order[k + 1]))
        i = NG - 1
        while not can(i): i -= 1
        sites += [(i, None), (idx["bar"], "bar")]
        done = 0
        for i, t_ in sorted(sites, key=lambda z: z[0]):
            hist += ["x" for h in range(done, i) for z in body[h] if z.kind in ("dma", "vst", "vld")]; done = i
            after = lambda nm: sum(1 if z == "x" else 4 for z in hist[hist.index(nm) + 1:])
            if t_ == "bar":
                body[i][0] = Stub([wait(vm=after("KV1"))], [body[i][0]]); continue
            code = []
            while todo and (t_ is None or f"Q{t_}" not in hist or sum(z != "x" for z in hist[hist.index(f"Q{t_}") + 1:]) < int(OPT.get("ahead", 2))):
                hist.append(todo[0]); code += pro_load(todo.pop(0))
            last = [z for z in hist if z != "x"][-1]
            if t_ is None:
                for b_ in range(3, NR + 1): code += pro_load(f"KV{b_}"); hist += ["x"] * 4
                code += [salu("s_mov_b32", sLinKV, (NR + 1) * 8192), salu("s_xor_b32", sKV, sLinKV, sRot)]
                if job:
                    code += [salu("s_mov_b32", "m0", sStg), salu("s_add_u32", sQ, sNx0, 2048),
                             dma(v(vSw0), SQ, sNx0, 0, qf, "q"), dma(v(vSw1), SQ, sNx0, 1024, qf, "q")] + ops["st0"] + ops["st1"]; hist += ["x"] * 4
                else: code += [salu("s_mov_b32", sQ, sNx0)]
            if code: code = [salu("s_mov_b32", sT2, "m0")] + code + [salu("s_mov_b32", "m0", sT2)]
            code.append(wait(vm=after(last if t_ is None else f"Q{t_}")))
            if t_ not in (None, 6): code += qreads(t_, tag="q0") + [wait(lgkm=0)]
            pre[i].append(Stub(code))
    out = []; t = 0; tb = None
    drop = OPT.get("drop", "").split()
    for i in range(NG):
        if i % 17 == 0:
            k = (i // 17 + 1) % n
            out.append(comment(f"slot {k}: QK subtile {order[k]}, PV subtile {order[k-1]}"))
        if i == 17 * (n - 1): cut = len(out) - 1
        if i == idx["bar"]: tb = t
        g = [x for x in pre[i] + body[i] if x.kind not in drop]
        out.append(ms[i]); out += g; t += gap_cost(g)
    return out[:cut], out[cut:], tb, t

PRO = ["KV0", "Q0", "Q1", "KV1", "Q2"]
def pro_load(x):
    n_ = int(x[-1]); o = []
    if x[0] == "K":
        for srd, off in ((SK, 0), (SV, BLK)):
            sl = (NR - 1 - n_) % NR * SLOT + off
            tag = "kv"
            o += [salu("s_add_u32", "m0", sW2112, sl), salu("s_xor_b32", sT0, n_ * 8192, sRot), dma(v(vLin), srd, sT0, 0, OPT["kv"], tag),
                  salu("s_add_u32", "m0", sW2112, sl + 32), nop(0), dma(v(vLin), srd, sT0, 1024, OPT["kv"], tag)]
        return o
    if n_ == 6: return q6loads(sCur6)
    return [salu("s_add_u32", "m0", sStg, 4096 * n_), salu("s_add_u32", sT0, sCur0, 4096 * n_)] + \
           [dma(v(vSw1 if n & 1 else vSw0), SQ, sT0, 1024 * n, OPT["q"], "q0") for n in range(4)]

def vk_sites(n, v67=(7, 7)):
    L = n - 1
    return {"v0": (0, 10), "v1": (0, 10), "v2": (0, 14), "v3": (0, 14), "v4": (1, 1), "v5": (1, 1), "v6": (1, v67[0]), "v7": (1, v67[1]),
            "k0": (L, 1), "k1": (L, 1), "k2": (L, 5), "k3": (L, 5), "k4": (L, 8), "k5": (L, 8), "k6": (L, 11), "k7": (L, 11), "last": (L, 16)}

def plan_a(job):
    p = vk_sites(7)
    p.update({"bar": (2, 0), "d0": (2, 4), "d1": (2, 9), "d2": (2, 14), "d3": (3, 2), "upk": (3, 13), "upv": (3, 13)})
    if job: p.update({"jr": (3, 9), "st0": (4, 3), "st1": (4, 9), "q0": (4, 14), "q1": (5, 2), "ups": (5, 10)})
    else: p.update({"e0": (3, 9), "pf": (4, 3), "e2": (4, 9), "e3": (4, 14), "e4": (5, 2), "e5": (5, 10)})
    return p

def plan_b(p_):
    if p_ == 0:
        p = vk_sites(7, (7, 9))
        p.update({"e0": (2, 3), "bar": (2, 10), "d0": (2, 14), "d1": (3, 2), "d2": (3, 9), "d3": (3, 14), "pf": (4, 3),
                  "upk": (4, 9), "upv": (4, 9), "e2": (4, 14), "e3": (5, 2), "e4": (5, 10)})
        return p
    p = vk_sites(6)
    p["jr"] = (1, 7)
    if p_ == 1: p.update({"bar": (1, 15), "d0": (2, 3), "d1": (2, 8), "d2": (2, 13), "d3": (3, 1), "st0": (3, 8), "st1": (3, 13), "q0": (4, 1), "q1": (4, 9)})
    if p_ == 2: p.update({"st0": (1, 15), "bar": (2, 1), "d0": (2, 8), "d1": (2, 13), "d2": (3, 1), "d3": (3, 8), "st1": (3, 13), "q0": (4, 1), "q1": (4, 9)})
    if p_ == 3: p.update({"st0": (1, 15), "bar": (2, 5), "d0": (2, 9), "d1": (2, 13), "d2": (3, 1), "d3": (3, 8), "st1": (3, 13), "q0": (4, 1), "q1": (4, 9)})
    p.update({"upk": (4, 12, "x"), "upv": (4, 14, "x"), "ups": (4, 16, "x")})
    return p

def stamp():
    if not OPT["stamps"]: return []
    return [raw("s_memtime s[60:61]", "smem", (), regs("s[60:61]")), raw("s_memrealtime s[62:63]", "smem", (), regs("s[62:63]")),
            wait(lgkm=0), valu("v_mov_b32", "v250", "s60"), valu("v_mov_b32", "v251", "s62"),
            raw("s_mov_b64 exec, 1", "salu"),
            I("buffer_store_dwordx2 v[250:251], off, s[64:67], s68", "vst", ["v250", "v251"], info=(None, [])),
            raw("s_mov_b64 exec, -1", "salu"), salu("s_add_u32", "s68", "s68", 8), nop(3)]
def stamp_init():
    if not OPT["stamps"]: return []
    return [raw("s_load_dwordx2 s[64:65], s[0:1], 40", "smem", (), regs("s[64:65]")), wait(lgkm=0),
            salu("s_mov_b32", "s66", 1 << 20), salu("s_mov_b32", "s67", "0x20000"),
            salu("s_lshl_b32", "s68", "s2", 2), salu("s_add_u32", "s68", "s68", sW), salu("s_lshl_b32", "s68", "s68", 8)] + stamp()
def dbg_begin():
    if not OPT.get("dbg"): return []
    return [raw("s_memtime s[70:71]", "smem", (), regs("s[70:71]")), raw("s_memrealtime s[72:73]", "smem", (), regs("s[72:73]")),
            raw("s_load_dwordx2 s[76:77], s[0:1], 32", "smem", (), regs("s[76:77]")), wait(lgkm=0),
            salu("s_mov_b32", "s78", 64), salu("s_mov_b32", "s79", "0x20000")] + ([
            salu("s_mov_b32", "s80", "s76"), salu("s_mov_b32", "s81", "s77"), salu("s_mov_b32", "s82", 256), salu("s_mov_b32", "s83", "0x20000"),
            salu("s_not_b32", "s61", "s72"), valu("v_mov_b32", "v252", "s61"), valu("v_mov_b32", "v254", 128), raw("s_mov_b64 exec, 1", "salu"),
            raw("buffer_atomic_umax v252, v254, s[80:83], 0 offen sc1"), raw("s_mov_b64 exec, -1", "salu")] if OPT.get("probe") == "abs" else [])
def dbg_end():
    if not OPT.get("dbg"): return []
    return [wait(vm=0), raw("s_memtime s[60:61]", "smem", (), regs("s[60:61]")), raw("s_memrealtime s[62:63]", "smem", (), regs("s[62:63]")),
            wait(lgkm=0), salu("s_sub_u32", "s60", "s60", "s70"), salu("s_sub_u32", "s62", "s62", "s72"),
            salu("s_lshl_b32", "s61", sW, 8), salu("s_add_u32", "s61", "s61", "s2"), salu("s_lshl_b32", "s61", "s61", 3),
            valu("v_mov_b32", "v252", "s60"), valu("v_mov_b32", "v253", "s62"), valu("v_mov_b32", "v254", "s61"),
            raw("s_mov_b64 exec, 1", "salu"),
            bstore("v[252:253]", "v254", "s[76:79]", 0, op="buffer_store_dwordx2"), raw("s_mov_b64 exec, -1", "salu")] + probe()
def probe():
    m = OPT.get("probe")
    if not m: return []
    tgt = {"fix": [salu("s_mov_b32", "s61", 15000)],
           "cyc": [salu("s_mul_hi_u32", "s61", "s60", "0x1999999a")],
           "dbl": [salu("s_lshl_b32", "s61", "s62", 1)],
           "abs": [valu("v_mov_b32", "v254", 128), valu("v_mov_b32", "v252", 0), raw("buffer_load_dword v252, v254, s[80:83], 0 offen sc0 sc1"), wait(vm=0),
                   valu("v_readfirstlane_b32", "s72", "v252"), nop(3), salu("s_not_b32", "s72", "s72"), salu("s_mov_b32", "s61", 15000)]}[m]
    return tgt + [label("L_probe"), raw("s_memrealtime s[62:63]", "smem", (), regs("s[62:63]")), wait(lgkm=0),
                  salu("s_sub_u32", "s62", "s62", "s72"), scmp("s_cmp_lt_u32", "s62", "s61"), branch("s_cbranch_scc1", "L_probe")]

def flat(gs): return [x for g in gs for x in g]
def spaced(seq):
    out = []
    for x in seq:
        if out and out[-1].kind == "trans" and x.kind == "valu" and out[-1].wr & x.rd: out.append(nop(0))
        out.append(x)
    return out
def weave(ms, fill, pres=()):
    out = []; fill = list(fill); pres = list(pres)
    for m_ in ms:
        out.append(m_)
        g = fill.pop(0) if fill else []
        if pres and (not g or g[0].kind in VAL): out.append(pres.pop(0))
        out += g
    return out + flat(fill) + pres
def pairs(seq): return [seq[i:i + 2] for i in range(0, len(seq), 2)]

def qaddr(ks): return v(vQa) if ks == 0 else v(vQx + ks - 1)
def oaddr(j): return v(vOw) if j == 0 else v(vOx + j - 1)
def qreads(t, slot=None, tag="q"):
    slot = t if slot is None else slot
    return ([need(tag, 4 * t + 4)] if t < 6 else []) + \
        [dsread("ds_read_b128", a(aQ + 16 * t + 4 * ks, 4), qaddr(ks), 4096 * slot) for ks in range(4)]
def q6bounce(slot): return [dswrite("ds_write_b128", v(vStb), a(aQ6n + 4 * n, 4), 4096 * slot + 1024 * n) for n in range(4)]
def q6loads(soff): return [bload(a(aQ + 96 + 4 * ks, 4), v(vQ6), SQ, soff, 64 * ks, OPT["q"]) for ks in range(4)]
def readback(slot, dst): return [dsread("ds_read_b128", v(dst + 4 * n, 4), v(vStb), 4096 * slot + 1024 * n) for n in range(4)]
def stores(src, soff): return [bstore(v(src + 4 * n, 4), v(vSw1 if n & 1 else vSw0), SO, soff, 1024 * n, OPT["o"]) for n in range(4)]

def flag(mask):
    return [salu("s_lshl_b32", sFlag, sFlag, 1), scmp("s_cmp_lg_u64", mask, 0), salu("s_addc_u32", sFlag, sFlag, 0)]
def l_own():
    r = lambda t: v(vRc + t)
    g = pairs([valu("v_accvgpr_read_b32", r(t), a(aL + 4 * t)) for t in range(6)])
    g += [[valu("v_max3_u32", v(vMx), r(0), r(1), r(2)), valu("v_min3_u32", v(vMn), r(0), r(1), r(2))],
          [valu("v_max3_u32", v(vMx), v(vMx), r(3), r(4)), valu("v_min3_u32", v(vMn), v(vMn), r(3), r(4))],
          [valu("v_max_u32", v(vMx), v(vMx), r(5)), valu("v_min_u32", v(vMn), v(vMn), r(5))],
          [valu("v_subrev_u32", v(vMx), sLo, v(vMx)), valu("v_subrev_u32", v(vMn), sLo, v(vMn))],
          [valu("v_max_u32", v(vMx), v(vMx), v(vMn)), valu("v_cmp_lt_u32", "vcc", sSpan, v(vMx))]]
    g += [[valu("v_rcp_f32", r(t), r(t))] for t in range(6)]
    return g, flag("vcc")
def l_six():
    r = v(vRc + 6)
    return [valu("v_subrev_u32", v(vMx), sLo, r), valu("v_cmp_lt_u32", "vcc", sSpan, v(vMx)), valu("v_rcp_f32", r, r), nop(1)] + flag("vcc")

def scale_pack(t, base, nblk):
    rp = v(vRc + (t & ~1), 2)
    mods = "op_sel_hi:[1,0]" if t % 2 == 0 else "op_sel:[0,1] op_sel_hi:[1,1]"
    o = [valu("v_pk_mul_f32", v(base + 2 * i, 2), v(base + 2 * i, 2), rp, mods=mods) for i in range(2 * nblk)]
    for b in range(nblk):
        o += [valu("v_cvt_pk_bf16_f32", v(base + 4 * b + i), v(base + 4 * b + 2 * i), v(base + 4 * b + 2 * i + 1)) for i in range(2)]
    return o
def epi(t, slot, tmp=None, side=()):
    o = []; side = list(side)
    for j0 in range(0, 8, 2):
        if t == 6:
            base = tmp + 4 * j0
            o += [valu("v_accvgpr_read_b32", v(base + i), a(aO6 + 4 * j0 + i)) for i in range(8)]
        else:
            base = 32 * t + 4 * j0
        o += scale_pack(t, base, 2)
        o += [dswrite("ds_write_b64", oaddr(j0 + b), v(base + 4 * b, 2), 4096 * slot) for b in range(2)]
        if side: o += side.pop(0)
    return o

def red_put():
    w = [dswrite("ds_write_b128", v(vStb), a(aO6 + 4 * j, 4), 1024 * j) for j in range(8)]
    pre_ = [valu("v_lshrrev_b32", v(vMn), 2, v(vLin)), valu("v_and_b32", v(vMx), 255, v(vMn)), valu("v_lshrrev_b32", v(vMn), 9, v(vMn)),
            valu("v_lshl_add_u32", v(vMn), v(vMn), 8, v(vMx)), valu("v_add_u32", v(vMn), LSUM, v(vMn)), valu("v_add_u32", v(vMx), LSUM, v(vMx)),
            dswrite("ds_write_b32", v(vMn), a(aL + 24), 0)]
    return pre_, pairs(w)
def red_get(tmp):
    o = [valu("v_add_u32", v(vMn), STG0, v(vLin)), valu("v_add_u32", v(vTMP + 4), STG0 + 2 * STGW, v(vLin))]
    for w in range(4):
        ad = v(vMn) if w < 2 else v(vTMP + 4)
        o += [dsread("ds_read_b128", v(tmp + 8 * w + 4 * b, 4), ad, (w & 1) * STGW + 1024 * b) for b in range(2)]
    o += [dsread("ds_read_b32", v(vTMP + w), v(vMx), 256 * w) for w in range(4)]
    return o
def red_fin(tmp, soff):
    o = [valu("v_add_f32", v(vTMP), v(vTMP), v(vTMP + 1)), valu("v_add_f32", v(vTMP + 2), v(vTMP + 2), v(vTMP + 3)),
         valu("v_add_f32", v(vRc + 6), v(vTMP), v(vTMP + 2))]
    o += l_six()
    for x, y in ((0, 1), (2, 3), (0, 2)):
        o += [valu("v_pk_add_f32", v(tmp + 8 * x + 2 * i, 2), v(tmp + 8 * x + 2 * i, 2), v(tmp + 8 * y + 2 * i, 2)) for i in range(4)]
    o += scale_pack(6, tmp, 2)
    o += [salu("s_lshl_b32", sT2, sW, 6), salu("s_add_u32", sT2, sT2, soff)]
    o += [bstore(v(tmp + 4 * b, 2), v(vFr), SO, sT2, 32 * b, OPT["o"], op="buffer_store_dwordx2") for b in range(2)]
    return o

def next_bases():
    return [salu("s_add_u32", sHead, sHead, HEAD_Q),
            salu("s_add_u32", sNx0, sHead, sE0), salu("s_add_u32", sNx6, sHead, sE6),
            salu("s_mov_b32", sT0, sE0), salu("s_mov_b32", sE0, sF0), salu("s_mov_b32", sF0, sT0),
            salu("s_mov_b32", sT0, sE6), salu("s_mov_b32", sE6, sF6), salu("s_mov_b32", sF6, sT0)]

def head0(role):
    g = softmax_groups()[:HEAD0]
    if role == "A": return spaced(flat(g)) + [salu("s_mov_b32", sCnt, 3), wait(lgkm=0)]
    z = v(vTMP + 4, 4)
    zs = [mfma(a(aO6 + 4 * j, 4), z, z, 0) for j in range(8)] + [mfma(a(aL + 24, 4), z, z, 0)]
    return [valu("v_mov_b32", v(vTMP + 4 + i), 0) for i in range(4)] + g[0] + weave(zs, g[1:], [salu("s_mov_b32", sCnt, 14)]) + [wait(lgkm=0)]
def enter_b():
    o = []
    for w in (1, 2, 3): o += [scmp("s_cmp_eq_u32", sW, w), branch("s_cbranch_scc1", f"L_fb{w}")]
    return o

def boundary(prev):
    ql = q6loads(sNx6)
    o = [wait(vm=8)] + [ql[0]] + qreads(0) + spaced(flat(softmax_groups()[HEADL:]))
    sal = [salu("s_mov_b32", "s18", QBYTES), salu("s_mov_b32", sO, sCur0), salu("s_mov_b32", sT1, sCur6),
           salu("s_mov_b32", sCur0, sNx0), salu("s_mov_b32", sCur6, sNx6)] + next_bases() + \
          [salu("s_mov_b32", sQ, sNx0), salu("s_mov_b32", sSM, sStg)]
    q1, q2 = qreads(1), qreads(2)
    o += [nop(1)] + weave([summ(5, False)] + [pv(5, j, False) for j in range(8)],
                          [q1[:3]] + [vread(j) for j in range(4)] + [q1[3:], q2[:3], q2[3:], [ql[1]]])
    o.append(wait(lgkm=14))
    ql = q6loads(sCur6)
    lg, fl = l_own()
    o += weave([qk(0, i) for i in range(8)], lg[:8], sal[:8])
    for g, s_ in zip(lg[8:], sal[8:14]): o += g + [s_]
    o += sal[14:] + fl + [valu("v_mov_b32", v(vSt), v(vStb)), ql[2]]
    dis = [scmp("s_cmp_eq_u32", sRound, 1), salu("s_cselect_b32", "s14", 0, "s14")]
    if prev == "A":
        o += [valu("v_accvgpr_read_b32", v(vRc + 6), a(aL + 24))] + l_six()
        o += epi(1, 1) + [ql[3]] + dis
        o += epi(6, 0, tmp=32) + readback(0, 32) + qreads(3)
        o += epi(2, 2)
        o += [wait(lgkm=8)] + epi(0, 0, side=[[x] for x in stores(32, sT1)]) + qreads(4)
        o += epi(3, 3) + [wait(vm=8)] + qreads(5) + epi(4, 4) + epi(5, 5)
    else:
        p0, pw = red_put()
        o += p0 + epi(2, 2, side=pw) + [ql[3]] + dis + qreads(3) + [wait(lgkm=4), barrier()] + red_get(64)
        o += epi(3, 3) + qreads(4) + [wait(lgkm=12), barrier()]
        o += red_fin(64, sT1)
        o += epi(0, 0) + epi(1, 1) + [wait(vm=6)] + qreads(5) + epi(4, 4) + epi(5, 5)
    o += [reset("q"), salu("s_mov_b64", "vcc", 0)]
    return o

def tail(prev):
    keep = OPT["o"]; OPT["o"] = OPT.get("ot", keep)
    o = tail_(prev); OPT["o"] = keep
    return o
def tail_(prev):
    o = spaced(flat(softmax_groups()[HEADL:])) + [salu("s_mov_b32", "s18", QBYTES), wait(vm=0)]
    lg, fl = l_own()
    o += [summ(5, False)] + [pv(5, j, False) for j in range(8)] + spaced(flat(lg)) + fl
    def st(t): return [[salu("s_add_u32", sT1, sCur0, 4096 * t)] + stores(32 * t, sT1)[:1]] + [[x] for x in stores(32 * t, sT1)[1:]]
    if prev == "A":
        o += [valu("v_accvgpr_read_b32", v(vRc + 6), a(aL + 24))] + l_six()
        o += epi(1, 1) + readback(1, 32) + epi(0, 0) + readback(0, 0)
        seq = [1, 0, 2, 3, 4, 5]
        for i in range(2, 6): o += [wait(lgkm=12)] + epi(seq[i], seq[i], side=st(seq[i - 2])) + readback(seq[i], 32 * seq[i])
        o += [wait(lgkm=12)] + epi(6, 0, tmp=32, side=st(4)) + readback(0, 32)
        o += [wait(lgkm=12)] + flat(st(5)) + [wait(lgkm=0)] + stores(32, sCur6)
    else:
        p0, pw = red_put()
        o += p0 + epi(2, 2, side=pw) + readback(2, 64) + [wait(lgkm=4), barrier()]
        o += epi(3, 3) + readback(3, 96) + [wait(lgkm=12)] + epi(4, 4, side=st(2)) + red_get(64) + [wait(lgkm=12)]
        o += flat(st(3)) + readback(4, 128) + [wait(lgkm=4), barrier()]
        o += red_fin(64, sCur6)
        o += [wait(lgkm=0)] + epi(5, 5, side=st(4)) + readback(5, 160) + epi(0, 0) + readback(0, 0)
        o += [wait(lgkm=12)] + epi(1, 1, side=st(5)) + readback(1, 32) + [wait(lgkm=12)] + flat(st(0)) + [wait(lgkm=0)] + flat(st(1))
    return o

def role_bases():
    return [salu("s_mul_i32", sE0, sW, 7 * 4096), salu("s_add_u32", sE6, sE0, 6 * 4096),
            salu("s_mul_i32", sF0, sW, 6 * 4096), salu("s_add_u32", sF0, sF0, 448 * 256), salu("s_mov_b32", sF6, 832 * 256),
            scmp("s_cmp_eq_u32", sRole, 0),
            salu("s_cselect_b32", sT0, sE0, sF0), salu("s_cselect_b32", sF0, sF0, sE0), salu("s_mov_b32", sE0, sT0),
            salu("s_cselect_b32", sT0, sE6, sF6), salu("s_cselect_b32", sF6, sF6, sE6), salu("s_mov_b32", sE6, sT0),
            salu("s_mul_i32", sHead, sPair, 4 * HEAD_Q), salu("s_sub_u32", sHead, sHead, HEAD_Q)]

def prologue():
    c = math.log2(math.e) / math.sqrt(128.0)
    L, G, Rw, X, Y, Z = (vTMP + i for i in range(6))
    rb = int(OPT.get("rb", 5))
    o = [scmp("s_cmp_ge_u32", "s2", 256), branch("s_cbranch_scc1", "L_end")] + dbg_begin()
    o += [raw("s_load_dwordx4 s[20:23], s[0:1], 0", "smem", (), regs("s[20:23]")),
          raw("s_load_dwordx4 s[24:27], s[0:1], 16", "smem", (), regs("s[24:27]")),
          valu("v_lshrrev_b32", v(X), 6, "v0"), valu("v_and_b32", v(L), 63, "v0"),
          valu("v_readfirstlane_b32", sW, v(X)),
          valu("v_lshrrev_b32", v(G), 4, v(L)), valu("v_and_b32", v(Rw), 15, v(L)),
          salu("s_lshr_b32", sT0, "s2", rb + 1), salu("s_lshl_b32", sT0, sT0, rb), salu("s_and_b32", sT1, "s2", (1 << rb) - 1),
          salu("s_add_u32", sPair, sT0, sT1), salu("s_bfe_u32", sRole, "s2", hex(0x10000 + rb))]
    if code_touch():
        o += [raw("s_getpc_b64 s[60:61]", "salu", (), ["s60", "s61"]), label("L_pc"),
              salu("s_lshr_b32", sT0, "s2", 3), salu("s_lshl_b32", sT0, sT0, 11),
              valu("v_lshlrev_b32", v(Y), 3, "v0"), valu("v_add_u32", v(Y), sT0, v(Y)), valu("v_min_u32", v(Y), "L_end-L_pc", v(Y)),
              valu("v_mov_b32", v(vPf + 1), "s61"),
              I(f"v_add_co_u32 v{vPf}, vcc, s60, v{Y}", "valu", ["s60", f"v{Y}"], [f"v{vPf}", "vcc"]), nop(1),
              I(f"v_addc_co_u32 v{vPf+1}, vcc, 0, v{vPf+1}, vcc", "valu", [f"v{vPf+1}", "vcc"], [f"v{vPf+1}", "vcc"])] + code_touch()
    rot = OPT.get("rot", "0")
    if rot == "0": o += [salu("s_mov_b32", sRot, 0)]
    elif rot == "lo": o += [salu("s_and_b32", sRot, sPair, 15), salu("s_lshl_b32", sRot, sRot, 13)]
    elif rot == "hi": o += [salu("s_lshr_b32", sRot, sPair, 3), salu("s_lshl_b32", sRot, sRot, 13)]
    elif rot == "mix": o += [salu("s_lshr_b32", sRot, sPair, 3), salu("s_lshl_b32", sT0, sPair, 1), salu("s_xor_b32", sRot, sRot, sT0),
                             salu("s_and_b32", sRot, sRot, 15), salu("s_lshl_b32", sRot, sRot, 13)]
    if OPT.get("adj"): o += [salu("s_lshr_b32", sPair, "s2", 1), salu("s_and_b32", sRole, "s2", 1)]
    o += [
          salu("s_mul_i32", sW2112, sW, 2 * PITCH), salu("s_add_u32", sTop, sW2112, (NR - 1) * SLOT),
          salu("s_mul_i32", sStg, sW, STGW), salu("s_add_u32", sStg, sStg, STG0)]
    o += role_bases()
    o += next_bases() + [salu("s_mov_b32", sCur0, sNx0), salu("s_mov_b32", sCur6, sNx6)] + next_bases()
    o += [comment("vLin = lane*16 + wave*2048, vStb = lane*16 + staging base"),
          valu("v_lshlrev_b32", v(Y), 4, v(L)), valu("v_add_u32", v(vStb), sStg, v(Y)),
          valu("v_lshl_add_u32", v(vLin), v(X), 11, v(Y)),
          comment("vSw0/1 = g*256 + ((lane&15) ^ s(rho))*16, rho = g (+4), s(rho) = rho | (rho&1)<<3"),
          valu("v_and_b32", v(Y), 1, v(G)), valu("v_lshl_add_u32", v(Y), v(Y), 3, v(G)),
          valu("v_xor_b32", v(Y), v(Y), v(Rw)), valu("v_lshlrev_b32", v(Y), 4, v(Y)),
          valu("v_lshl_add_u32", v(vSw0), v(G), 8, v(Y)), valu("v_xor_b32", v(vSw1), 64, v(vSw0)),
          valu("v_lshlrev_b32", v(Y), 4, v(G)), valu("v_lshl_add_u32", v(vQ6), v(Rw), 8, v(Y))]
    o += [wait(lgkm=0),
          salu("s_lshl_b32", sT0, sPair, 19),
          salu("s_add_u32", "s4", "s22", sT0), salu("s_addc_u32", "s5", "s23", 0), salu("s_mov_b32", "s6", 4 * HEAD_KV), salu("s_mov_b32", "s7", "0x20000"),
          salu("s_add_u32", "s8", "s24", sT0), salu("s_addc_u32", "s9", "s25", 0), salu("s_mov_b32", "s10", 4 * HEAD_KV), salu("s_mov_b32", "s11", "0x20000"),
          salu("s_mov_b32", "s12", "s20"), salu("s_mov_b32", "s13", "s21"), salu("s_mov_b32", "s14", QBYTES), salu("s_mov_b32", "s15", "0x20000"),
          salu("s_mov_b32", "s16", "s26"), salu("s_mov_b32", "s17", "s27"), salu("s_mov_b32", "s18", 0), salu("s_mov_b32", "s19", "0x20000")]
    o += stamp_init()
    o += pro_load(PRO[0])
    for i in range(int(OPT.get("stag", 0))):
        o += [scmp("s_cmp_eq_u32", sRole, 0), branch("s_cbranch_scc1", f"L_go{i}"), I("s_waitcnt vmcnt(0)", "other")]
        if i + 1 < int(OPT["stag"]): o += [I(x.text, "other") for x in pro_load(f"KV{i + 1}")]
        o += [label(f"L_go{i}")]
    for x in PRO[1:3]: o += pro_load(x)
    o += [comment("staging: Q fragment row*256 + (g ^ s)*16, O write row*256 + ((g>>1) ^ s)*16 + (g&1)*8; vFr = row*256 + g*8"),
          valu("v_and_b32", v(Y), 1, v(Rw)), valu("v_and_b32", v(Z), 7, v(Rw)), valu("v_lshl_add_u32", v(Y), v(Y), 3, v(Z)),
          valu("v_lshlrev_b32", v(Z), 8, v(Rw)), valu("v_lshl_add_u32", v(vFr), v(G), 3, v(Z)), valu("v_add_u32", v(Z), sStg, v(Z)),
          valu("v_xor_b32", v(X), v(Y), v(G)), valu("v_lshl_add_u32", v(vQa), v(X), 4, v(Z)),
          valu("v_lshrrev_b32", v(X), 1, v(G)), valu("v_xor_b32", v(X), v(Y), v(X)), valu("v_lshl_add_u32", v(vOw), v(X), 4, v(Z)),
          valu("v_and_b32", v(X), 1, v(G)), valu("v_lshl_add_u32", v(vOw), v(X), 3, v(vOw)),
          comment("ring: K piece row&7, line row>>3, chunk g; V piece (lane>>2)&7, line lane>>5, 8-byte chunk lane&3"),
          salu("s_mov_b32", sT0, PITCH),
          valu("v_and_b32", v(X), 7, v(Rw)), valu("v_mul_lo_u32", v(X), v(X), sT0),
          valu("v_lshrrev_b32", v(Y), 3, v(Rw)), valu("v_lshl_add_u32", v(X), v(Y), 8, v(X)),
          valu("v_lshl_add_u32", v(X), v(G), 4, v(X)), valu("v_subrev_u32", v(vKb), sW2112, v(X)),
          valu("v_bfe_u32", v(X), v(L), 2, 3), valu("v_mul_lo_u32", v(X), v(X), sT0),
          valu("v_lshrrev_b32", v(Y), 5, v(L)), valu("v_lshl_add_u32", v(X), v(Y), 8, v(X)),
          valu("v_and_b32", v(Y), 3, v(L)), valu("v_lshl_add_u32", v(X), v(Y), 3, v(X)),
          valu("v_subrev_u32", v(vVb), sW2112, v(X)),
          valu("v_add_u32", v(vK), sTop, v(vKb)), valu("v_add_u32", v(vV), sTop, v(vVb)),
          comment("row-sum operand: ones in rows 0,4,8,12"),
          valu("v_mov_b32", v(X), "0x3f803f80"), valu("v_cmp_eq_u32", "vcc", 0, v(Y)), nop(1),
          valu("v_cndmask_b32", v(X), 0, v(X), "vcc")]
    o += [valu("v_accvgpr_write_b32", a(aONE + i), v(X)) for i in range(4)]
    o += [salu("s_mov_b32", sC, hex(fbits(c))), salu("s_mov_b32", sRd, sTop),
          salu("s_mov_b32", sQ, sNx0), salu("s_mov_b32", sO, 0), salu("s_mov_b32", sSM, sStg),
          salu("s_mov_b32", sRound, 4), salu("s_mov_b32", sFlag, 0),
          salu("s_mov_b32", sLo, hex(L_LO)), salu("s_mov_b32", sSpan, hex(L_HI - L_LO)),
          valu("v_mov_b32", v(vSt), v(vStb))]
    o += [valu("v_xor_b32", v(vQx + ks - 1), 64 * ks, v(vQa)) for ks in (1, 2, 3)]
    o += [valu("v_xor_b32", v(vOx + j - 1), 32 * j, v(vOw)) for j in range(1, 8)]
    o += [salu("s_mov_b32", sKV, "0x40000000"), salu("s_mov_b32", sLinKV, "0x40000000"), salu("s_mov_b32", sQ, "0x40000000")]
    o += pro_load(PRO[3])
    o += [salu("s_mov_b64", "vcc", -1), wait(vm=8), need("kv", 4), barrier()]
    o += [kread(i) for i in range(8)] + qreads(0, tag="q0") + pro_load(PRO[4]) + [wait(lgkm=0)]
    o += weave([qk(0, i) for i in range(8)], [vread(j) for j in range(4)])
    o += [wait(vm=8)] + qreads(1, tag="q0")
    return o

def slow():
    Q, S, P, O, K, V, Lr = 0, 16, 24, 32, 64, 96, 128
    M, M2, AK, AV, AL, AQ = 132, 133, 134, 135, 136, 137
    o = [label("L_slow"), wait(vm=0, lgkm=0), salu("s_mov_b32", "s14", QBYTES)] + role_bases()
    o += [salu("s_add_u32", sT0, sStg, sW2112), valu("v_add_u32", v(AK), sT0, v(vKb)), valu("v_add_u32", v(AV), sT0, v(vVb)),
          valu("v_and_b32", v(AL), 1023, v(vLin)), valu("v_mov_b32", v(AQ), v(vQ6)),
          salu("s_mov_b32", sRound, 0),
          label("L_sround")] + next_bases() + [salu("s_mov_b32", sI, 0),
          label("L_ssub"),
          scmp("s_cmp_eq_u32", sI, 6), salu("s_cselect_b32", sT1, 6, 7), salu("s_lshl_b32", sT0, sRound, 1), salu("s_sub_u32", sT1, sT1, sT0),
          scmp("s_bitcmp1_b32", sFlag, sT1), branch("s_cbranch_scc0", "L_snext"),
          salu("s_lshl_b32", sT0, sI, 12), salu("s_add_u32", sO, sNx0, sT0), scmp("s_cmp_eq_u32", sI, 6), salu("s_cselect_b32", sO, sNx6, sO)]
    o += [bload(v(Q + 4 * ks, 4), v(AQ), SQ, sO, 64 * ks) for ks in range(4)]
    def fetch(srd, off):
        r = []
        for n in range(8):
            r += [salu("s_add_u32", "m0", sStg, off + PITCH * n), salu("s_add_u32", sT0, sKV, 1024 * n), dma(v(AL), srd, sT0)]
        return r
    kr = [dsread("ds_read_b128", v(K + 4 * i, 4), v(AK), (i >> 2) * 512 + (i & 3) * 64) for i in range(8)]
    qks = [mfma(v(S + 4 * (i >> 2), 4), v(K + 4 * i, 4), v(Q + 4 * (i & 3), 4), 0 if i & 3 == 0 else v(S + 4 * (i >> 2), 4)) for i in range(8)]
    loop = lambda lab: [salu("s_add_u32", sKV, sKV, 8192), salu("s_add_u32", sJ, sJ, 1), scmp("s_cmp_lt_u32", sJ, 16), branch("s_cbranch_scc1", lab)]
    start = [salu("s_lshl_b32", sKV, sRound, 17), salu("s_mov_b32", sJ, 0)]
    o += [valu("v_mov_b32", v(M), "0xff800000")] + start + [label("L_smax")]
    o += fetch(SK, 0) + [wait(vm=0)] + kr + [wait(lgkm=0)] + qks + [nop(8)]
    o += [valu("v_max3_f32", v(M), v(M), v(S + 2 * i), v(S + 2 * i + 1)) for i in range(4)] + loop("L_smax")
    for sw in ("v_permlane32_swap_b32", "v_permlane16_swap_b32"):
        o += [valu("v_mov_b32", v(M2), v(M)), nop(1), I(f"{sw} v{M}, v{M2}", "valu", [f"v{M}", f"v{M2}"], [f"v{M}", f"v{M2}"]), nop(1),
              valu("v_max_f32", v(M), v(M), v(M2))]
    o += [valu("v_mov_b32", v(O + i), 0) for i in range(32)] + [valu("v_mov_b32", v(Lr + i), 0) for i in range(4)]
    o += start + [label("L_spv")]
    o += fetch(SK, 0) + fetch(SV, BLK) + [wait(vm=0)] + kr + [wait(lgkm=0)]
    o += [dsread("ds_read_b64_tr_b16", v(V + 4 * j + 2 * hb, 2), v(AV), BLK + hb * 512 + j * 32) for j in range(8) for hb in (0, 1)]
    o += qks + [nop(8)]
    o += [valu("v_sub_f32", v(S + i), v(S + i), v(M)) for i in range(8)] + [valu("v_mul_f32", v(S + i), sC, v(S + i)) for i in range(8)]
    o += [valu("v_exp_f32", v(S + i), v(S + i)) for i in range(8)] + [nop(0)]
    o += [valu("v_cvt_pk_bf16_f32", v(P + i), v(S + 2 * i), v(S + 2 * i + 1)) for i in range(4)] + [wait(lgkm=0), nop(1)]
    o += [mfma(v(Lr, 4), a(aONE, 4), v(P, 4), v(Lr, 4))] + [mfma(v(O + 4 * j, 4), v(V + 4 * j, 4), v(P, 4), v(O + 4 * j, 4)) for j in range(8)]
    o += loop("L_spv") + [nop(8), valu("v_rcp_f32", v(Lr), v(Lr)), nop(0)]
    o += [valu("v_mul_f32", v(O + i), v(O + i), v(Lr)) for i in range(32)]
    for j in range(8):
        o += [valu("v_cvt_pk_bf16_f32", v(O + 4 * j + i), v(O + 4 * j + 2 * i), v(O + 4 * j + 2 * i + 1)) for i in range(2)]
    o += [bstore(v(O + 4 * j, 2), v(vFr), SO, sO, 32 * j, op="buffer_store_dwordx2") for j in range(8)] + [wait(vm=0)]
    o += [label("L_snext"), salu("s_add_u32", sI, sI, 1), scmp("s_cmp_lt_u32", sI, 7), branch("s_cbranch_scc1", "L_ssub"),
          salu("s_add_u32", sRound, sRound, 1), scmp("s_cmp_lt_u32", sRound, 4), branch("s_cbranch_scc1", "L_sround")]
    return o

def build():
    VA = {p: 40 for p in range(4)}
    FA = step(ORDER7, True, plan_a(True), 2)
    PA = {p: step(ORDER7, False, plan_a(p != 3), VA[p], "L_exitA" if p == 3 else None) for p in range(4)}
    VB = {p: 40 for p in range(4)}; VFB = {0: 4, 1: 8, 2: 9, 3: 9}
    ordb = lambda p: ORDER7 if p == 0 else ORDER6
    FB = {p: step(ordb(p), True, plan_b(p), VFB[p], zero6=False) for p in range(4)}
    PB = {p: step(ordb(p), False, plan_b(p), VB[p], "L_exitB") for p in range(4)}
    if OPT.get("verbose"):
        print("A steps", [PA[p][3] for p in range(4)], file=sys.stderr)
        print("B steps", [PB[p][3] for p in range(4)], "barrier intervals", [PB[p][3] - PB[p][2] + PB[(p + 1) % 4][2] for p in range(4)], file=sys.stderr)
    both = lambda s_: s_[0] + s_[1]
    jump = lambda l: [branch("s_branch", l)]
    pro = prologue()
    sel = [scmp("s_cmp_eq_u32", sRole, 0), branch("s_cbranch_scc1", "L_headA"), branch("s_branch", "L_headB")]
    ex = lambda r: stamp() + [salu("s_sub_u32", sRound, sRound, 1), scmp("s_cmp_eq_u32", sRound, 0), branch("s_cbranch_scc1", f"L_tail{r}")]
    exA, exB, bA, bB, hA, hB, tA, tB = ex("A"), ex("B"), boundary("A"), boundary("B"), head0("A") + stamp(), head0("B") + stamp(), tail("A"), tail("B")
    fin = stamp() + ([wait(vm=0)] + stamp() if OPT["stamps"] else []) + dbg_end() + \
        [scmp("s_cmp_eq_u32", sFlag, 0), branch("s_cbranch_scc1", "L_end")]
    sl = slow()
    prog = pro + sel
    fine = stamp() if OPT["stamps"] == "2" else []
    prog += [label("L_exitB")] + exB + bB + [label("L_headA")] + hA + both(FA)
    prog += [label("L_pa1")] + both(PA[1]) + both(PA[2]) + both(PA[3]) + both(PA[0]) + fine + jump("L_pa1")
    prog += [label("L_exitA")] + exA + bA + [label("L_headB")] + hB + enter_b() + both(FB[0])
    prog += [label("L_pb1")] + both(PB[1]) + [label("L_pb2")] + both(PB[2]) + [label("L_pb3")] + both(PB[3]) + [label("L_pb0")] + both(PB[0]) + fine + jump("L_pb1")
    for w in (1, 2, 3): prog += [label(f"L_fb{w}")] + both(FB[w]) + jump(f"L_pb{(w + 1) % 4}")
    prog += [label("L_tailB")] + tB + jump("L_fin") + [label("L_tailA")] + tA + [label("L_fin")] + fin + sl + [label("L_end"), raw("s_endpgm")]
    prog, far = expand(prog, "emit")
    k = next(i for i, x in enumerate(prog) if x.text == "L_exitB:")
    prog = prog[:k] + far + prog[k:]
    paths = []
    for w in range(4):
        ra = hA + both(FA) + flat(both(PA[j % 4]) for j in range(1, 15)) + PA[3][0] + exA
        rb = hB + enter_b() + both(FB[w]) + flat(both(PB[(w + j) % 4]) for j in range(1, 15)) + PB[(w + 15) % 4][0] + exB
        paths.append((pro + sel + expand(ra, "on") + expand(bA + rb + bB + ra + bA + rb + tB + fin, "off"), f"AB w{w}"))
        paths.append((pro + sel + expand(rb, "on") + expand(bB + ra + bA + rb + bB + ra + tA + fin, "off"), f"BA w{w}"))
    while any([tighten(p) for p, _ in paths]): pass
    if OPT.get("verbose"): print("barrier waits", [x.info[0] for x in prog if isinstance(x, AutoWait)], file=sys.stderr)
    errs = check(sl, "slow")
    for p, nm in paths: errs += check(p, nm)
    errs = list(dict.fromkeys(errs))
    for e in errs[:40]: print("CHECK:", e, file=sys.stderr)
    return prog, errs

HEADER = """; Attention forward, B=16 H=32 Sq=848 Sk=512 D=128, bf16 (written by the generator gen/gen.py).
; One workgroup per CU, four heads per pair of workgroups. Per head one workgroup takes rows 0..447 (round A: 7 x 16 rows
; per wave), the other rows 448..847 (round B: 6 x 16 rows per wave, the last 16 rows split over the waves by key block).
; S^T = K Q^T and O^T = V^T P^T with 16x16x32 MFMA; K/V stream through an LDS ring, Q/O through per-wave LDS staging.
; exp2 runs without max subtraction; every row sum is range-checked and rows outside [2^-24, 2^40] are recomputed
; with the true row max (L_slow).
; @launch grid=(256,1,1) block=(256,1,1) lds=%d
.amdgcn_target "amdgcn-amd-amdhsa--gfx950"
.text
.globl %s
.p2align 8
.type %s,@function
%s:
"""
FOOTER = """.section .rodata,"a"
.p2align 6
.amdhsa_kernel %s
  .amdhsa_next_free_vgpr 512
  .amdhsa_next_free_sgpr 96
  .amdhsa_accum_offset 256
  .amdhsa_group_segment_fixed_size 0
  .amdhsa_kernarg_size 48
  .amdhsa_user_sgpr_count 2
  .amdhsa_user_sgpr_kernarg_segment_ptr 1
  .amdhsa_system_sgpr_workgroup_id_x 1
  .amdhsa_float_denorm_mode_32 3
.end_amdhsa_kernel
"""

def emit(path):
    prog, errs = build()
    with open(path, "w") as f:
        f.write(HEADER % (LDS, KNAME, KNAME, KNAME))
        for x in prog:
            if x.text: f.write(("" if x.text.endswith(":") else "    ") + x.text + "\n")
        f.write(FOOTER % KNAME)
    return errs

if __name__ == "__main__":
    out = sys.argv[1]
    for kv in sys.argv[2:]:
        k, val = kv.split("=")
        OPT[k] = val.replace("+", " ")
    sys.exit(1 if emit(out) else 0)
```
